```python
import torch

def _softmax(x, axis=-1):
    return torch.softmax(x, dim=axis)
def _gelu(x):
    return torch.nn.functional.gelu(x, approximate="tanh")
def _silu(x):
    return torch.nn.functional.silu(x)
def _sigmoid(x):
    return torch.sigmoid(x)
def _layernorm(x, axis=-1, eps=1e-5):
    m = x.mean(dim=axis, keepdim=True)
    v = x.var(dim=axis, keepdim=True, unbiased=False)
    return (x - m) / torch.sqrt(v + eps)
def _scatter_add(tgt, idx, src, axis=0):
    return tgt.clone().index_add_(axis, idx, src)
def _segment_sum(src, seg, n):
    out = torch.zeros((n,) + src.shape[1:], dtype=src.dtype)
    return out.index_add_(0, seg, src)
def _pad(x, pw):
    flat = tuple(v for pair in reversed(pw) for v in pair)
    return torch.nn.functional.pad(x, flat)

kernel_name = 'parallel_sum__ssm_conv_s5__dense_activation_silu__prompt'

def setup_inputs():

    _w = (lambda a: (lambda t: t.to(torch.bfloat16) if t.is_floating_point() else t)(torch.as_tensor(a)))
    def _A_setup():
        B, S, D = 1, 2048, 512
        P = D
        Lambda_re = -0.5 * (lambda _x: torch.exp(torch.as_tensor(_x)))((lambda *s: torch.randn(*s, dtype=torch.bfloat16) * 0.2)(P))
        Lambda_im = (lambda *s: torch.randn(*s, dtype=torch.bfloat16) * 0.8)(P) * 1.0
        B_re = (lambda *s: torch.randn(*s, dtype=torch.bfloat16) * 0.2)(P, D) * (D ** -0.5)
        B_im = (lambda *s: torch.randn(*s, dtype=torch.bfloat16) * 0.2)(P, D) * (D ** -0.5)
        C_re = (lambda *s: torch.randn(*s, dtype=torch.bfloat16) * 0.2)(D, P) * (P ** -0.5)
        C_im = (lambda *s: torch.randn(*s, dtype=torch.bfloat16) * 0.2)(D, P) * (P ** -0.5)
        log_dt = (lambda *s: torch.randn(*s, dtype=torch.bfloat16) * 0.2)(P) * 0.3 - 2.0
        Dskip = (lambda *s: torch.randn(*s, dtype=torch.bfloat16) * 0.05)(D)
        return {
            "x": _w((lambda *s: torch.randn(*s, dtype=torch.bfloat16) * 0.05)(B, S, D)),
            "Lambda_re": _w(Lambda_re),
            "Lambda_im": _w(Lambda_im),
            "B_re": _w(B_re),
            "B_im": _w(B_im),
            "C_re": _w(C_re),
            "C_im": _w(C_im),
            "log_dt": _w(log_dt),
            "Dskip": _w(Dskip),
        }
    _A_in = _A_setup()

    def _B_setup():
        B, S, D, F = 1, 2048, 512, 1792
        return {
            "x": _w((lambda *s: torch.randn(*s, dtype=torch.bfloat16) * 0.05)(B, S, D)),
            "w1": _w((lambda *s: torch.randn(*s, dtype=torch.bfloat16) * 0.8)(D, F) * (D ** -0.5)),
            "w2": _w((lambda *s: torch.randn(*s, dtype=torch.bfloat16) * 0.2)(F, D) * (F ** -0.5)),
        }
    _B_in = _B_setup()

    return {
        "A_x": _A_in["x"],
        "A_Lambda_re": _A_in["Lambda_re"],
        "A_Lambda_im": _A_in["Lambda_im"],
        "A_B_re": _A_in["B_re"],
        "A_B_im": _A_in["B_im"],
        "A_C_re": _A_in["C_re"],
        "A_C_im": _A_in["C_im"],
        "A_log_dt": _A_in["log_dt"],
        "A_Dskip": _A_in["Dskip"],
        "B_x": _B_in["x"],
        "B_w1": _B_in["w1"],
        "B_w2": _B_in["w2"],
    }

def reference(A_x, A_Lambda_re, A_Lambda_im, A_B_re, A_B_im, A_C_re, A_C_im, A_log_dt, A_Dskip, B_x, B_w1, B_w2):
    def _A_ref(x, Lambda_re, Lambda_im, B_re, B_im, C_re, C_im, log_dt, Dskip):
        Bsz, L, H = x.shape
        Lam = Lambda_re + 1j * Lambda_im
        Bmat = B_re + 1j * B_im
        Cmat = C_re + 1j * C_im
        dt = torch.exp(log_dt)
        Lam_bar = torch.exp(dt * Lam)
        B_bar = ((Lam_bar - 1.0) / Lam)[:, None] * Bmat
        Bu = torch.einsum("bld,pd->blp", x + 0j, B_bar)
        h = torch.zeros_like(Bu[:, 0, :])
        hs = []
        for t in range(L):
            h = Lam_bar[None, :] * h + Bu[:, t, :]
            hs.append(h)
        hseq = torch.stack(hs, 1)
        y = 2.0 * torch.einsum("blp,dp->bld", hseq, Cmat).real + x * Dskip[None, None, :]
        return y

    def _B_ref(x, w1, w2):
        h = torch.einsum("bsd,df->bsf", x, w1)
        h = _silu(h)
        out = torch.einsum("bsf,fd->bsd", h, w2)
        return out

    x = A_x
    xn = _layernorm(x, axis=-1)
    return x + _A_ref(xn, A_Lambda_re, A_Lambda_im, A_B_re, A_B_im, A_C_re, A_C_im, A_log_dt, A_Dskip) + _B_ref(xn, B_w1, B_w2)
```

```python
import re

_RANGE = re.compile(r'^([vas])\[(\d+):(\d+)\]$')
_SINGLE = re.compile(r'^([vas])(\d+)$')


def regs_of(tok):
    tok = tok.strip()
    if tok.startswith('-'):
        tok = tok[1:]
    if tok.startswith('abs(') and tok.endswith(')'):
        tok = tok[4:-1]
    if tok.startswith('|') and tok.endswith('|'):
        tok = tok[1:-1]
    m = _RANGE.match(tok)
    if m:
        return [m.group(1) + str(i) for i in range(int(m.group(2)), int(m.group(3)) + 1)]
    m = _SINGLE.match(tok)
    if m:
        return [tok]
    if tok in ('vcc', 'exec'):
        return [tok + '_lo', tok + '_hi']
    if tok in ('m0', 'vcc_lo', 'vcc_hi', 'exec_lo', 'exec_hi'):
        return [tok]
    return []


TRANS = ('v_exp_f32', 'v_log_f32', 'v_rcp_f32', 'v_rsq_f32', 'v_sqrt_f32', 'v_sin_f32', 'v_cos_f32')


class Inst:
    __slots__ = ('text', 'op', 'kind', 'defs', 'uses', 'tag', 'optional', 'dpp', 'passes', 'srcc', 'srcab', 'wide_store', 'note')

    def __init__(self, text, tag=None, optional=False):
        self.text = text
        self.tag = tag
        self.optional = optional
        self.dpp = False
        self.passes = 0
        self.srcc = []
        self.srcab = []
        self.wide_store = []
        self.note = None
        t = text.split(';')[0].strip()
        if t.endswith(':') or t.startswith('.') or t == '':
            self.op = t
            self.kind = 'label' if t.endswith(':') else 'directive'
            self.defs, self.uses = [], []
            return
        parts = t.split(None, 1)
        op = parts[0]
        self.op = op
        rest = parts[1] if len(parts) > 1 else ''
        ops = [o.strip() for o in rest.split(',')] if rest else []
        mods = ''
        if ops:
            last = ops[-1].split(None, 1)
            if last:
                ops[-1] = last[0]
                mods = last[1] if len(last) > 1 else ''
        R = [regs_of(o) for o in ops]
        flat = lambda xs: [r for x in xs for r in x]
        defs, uses = [], []
        if op.startswith('v_mfma'):
            kind = 'mfma'
            defs = R[0]
            uses = flat(R[1:])
            self.srcab = R[1] + R[2]
            self.srcc = R[3]
            self.passes = 8 if '32x32x16' in op else 4 if '16x16x32' in op else None
            assert self.passes, op
        elif op.startswith('v_'):
            kind = 'valu'
            base = op.replace('_e32', '').replace('_e64', '').replace('_dpp', '').replace('_sdwa', '')
            if base in TRANS:
                kind = 'trans'
            if 'row_' in mods or 'quad_perm' in mods or op.endswith('_dpp'):
                self.dpp = True
            if base.startswith('v_permlane') and base.endswith('swap_b32'):
                defs = R[0] + R[1]
                uses = R[0] + R[1]
            elif base.startswith(('v_fmac', 'v_dot2c', 'v_pk_fmac')):
                defs = R[0]
                uses = flat(R)
            elif base in ('v_add_co_u32', 'v_addc_co_u32', 'v_sub_co_u32'):
                defs = R[0] + R[1]
                uses = flat(R[2:])
            elif base == 'v_writelane_b32':
                defs = R[0]
                uses = flat(R)
            else:
                defs = R[0]
                uses = flat(R[1:])
            if self.dpp:
                uses = uses + R[0]
        elif op.startswith('ds_'):
            kind = 'ds'
            if op.startswith(('ds_read', 'ds_bpermute', 'ds_permute', 'ds_swizzle')):
                defs = R[0]
                uses = flat(R[1:])
            else:
                uses = flat(R)
        elif op.startswith(('buffer_', 'global_')):
            kind = 'vmem'
            toks = (' ' + mods + ' ')
            if op in ('buffer_inv', 'buffer_wbl2'):
                pass
            elif ' lds ' in toks or op.startswith('global_load_lds'):
                kind = 'dma'
                uses = flat(R) + ['m0']
            elif '_load_' in op:
                defs = R[0]
                uses = flat(R[1:])
            elif 'atomic' in op:
                uses = flat(R)
                if ' sc0 ' in toks:
                    defs = R[0]
            else:
                uses = flat(R)
                if op.endswith(('x3', 'x4')):
                    self.wide_store = R[0] if op.startswith('buffer_') else R[1]
        elif op in ('s_waitcnt', 's_barrier', 's_nop', 's_sleep', 's_endpgm', 's_setprio'):
            kind = op[2:]
        elif op.startswith(('s_cbranch', 's_branch')):
            kind = 'branch'
        elif op.startswith(('s_load', 's_memtime', 's_memrealtime', 's_buffer_load')):
            kind = 'smem'
            defs = R[0]
            uses = flat(R[1:])
        elif op.startswith('s_cmp') or op.startswith('s_bitcmp'):
            kind = 'salu'
            uses = flat(R)
        elif op.startswith('s_'):
            kind = 'salu'
            defs = R[0]
            uses = flat(R[1:])
            if 'saveexec' in op:
                defs = defs + ['exec_lo', 'exec_hi']
        else:
            raise ValueError('unknown op: ' + text)
        self.kind = kind
        self.defs = defs
        self.uses = uses


class Mark:
    def __init__(self, what, tag=None):
        self.what = what
        self.tag = tag


class Group:
    def __init__(self, items):
        self.items = items


def flat(items):
    out = []
    for it in items:
        if isinstance(it, Group):
            out.extend(flat(it.items))
        else:
            out.append(it)
    return out


def weight(it):
    return len(flat([it]))


class _Atomic:
    n = 0

    def __init__(self, prog, optional):
        self.prog = prog
        self.optional = optional

    def __enter__(self):
        self.saved = (self.prog.items, self.prog.force_opt)
        self.prog.items = []
        if self.optional:
            _Atomic.n += 1
            self.prog.force_opt = _Atomic.n
        return self.prog

    def __exit__(self, *a):
        g = Group(self.prog.items)
        self.prog.items, self.prog.force_opt = self.saved
        self.prog.items.append(g)


class Prog:
    def __init__(self):
        self.items = []
        self.force_opt = False

    def __call__(self, text, tag=None):
        for line in text.split('\n'):
            if line.strip():
                self.items.append(Inst(line.strip(), tag, self.force_opt))
        return self

    def atomic(self, optional=False):
        return _Atomic(self, optional)

    def wait_vm(self, *tags):
        self.items.append(Mark('vm', tags))

    def wait_lgkm0(self):
        self.items.append(Mark('lgkm0'))

    def extend(self, other):
        items = other.items if isinstance(other, Prog) else other
        if self.force_opt:
            for it in flat(items):
                if isinstance(it, Inst):
                    it.optional = self.force_opt
        self.items.extend(items)


def merge(main, side, after=lambda it: isinstance(it, Inst) and it.kind == 'mfma', start=0, end=None):
    main = list(main.items if isinstance(main, Prog) else main)
    side = list(side.items if isinstance(side, Prog) else side)
    anchors = [i for i, it in enumerate(main) if after(it)]
    if end is None:
        end = len(anchors)
    anchors = anchors[start:end]
    n = len(anchors)
    out = []
    pos = 0
    k = 0
    aset = {a: j for j, a in enumerate(anchors)}
    total = sum(weight(x) for x in side)
    done = 0
    for i, it in enumerate(main):
        out.append(it)
        if i in aset:
            j = aset[i]
            upto = (total * (j + 1) + n - 1) // n
            while pos < len(side) and (done < upto):
                out.append(side[pos])
                done += weight(side[pos])
                pos += 1
    assert pos == len(side), (pos, len(side), n)
    p = Prog()
    p.items = out
    return p


class _Pend:
    __slots__ = ('defs', 'tag', 'opt', 'seen')

    def __init__(self, it):
        self.defs = set(it.defs)
        self.tag = it.tag
        self.opt = it.optional
        self.seen = None


def _retire(fifo, idx, blk):
    keep = []
    for i, e in enumerate(fifo):
        if i > idx:
            keep.append(e)
        elif blk and e.opt != blk:
            e.seen = blk
            keep.append(e)
    return keep


def place_waits(items):
    out = []
    lg, vm, smem = [], [], []

    def need(fifo, idx, blk):
        return sum(1 for e in fifo[idx + 1:] if (not e.opt) or (blk and e.opt == blk))

    def live(e, blk):
        return not (blk and e.seen == blk)

    for it in items:
        wl = wv = None
        if isinstance(it, Mark):
            if it.what == 'lgkm0':
                if lg or smem:
                    wl = 0
                    lg, smem = [], []
            elif it.what == 'vm':
                idx = max((i for i, e in enumerate(vm) if e.tag in it.tag), default=None)
                if idx is not None:
                    wv = need(vm, idx, False)
                    vm = vm[idx + 1:]
            if wl is not None or wv is not None:
                out.append(_wait(wv, wl))
            continue
        touched = set(it.defs) | set(it.uses)
        blk = it.optional
        if it.kind == 'waitcnt':
            assert not blk
            m = re.search(r'vmcnt\((\d+)\)', it.text)
            if m and int(m.group(1)) == 0:
                vm = []
            m = re.search(r'lgkmcnt\((\d+)\)', it.text)
            if m and int(m.group(1)) == 0:
                lg, smem = [], []
            out.append(it)
            continue
        if any(touched & e.defs and live(e, blk) for e in smem):
            wl = 0
            smem = _retire(smem, len(smem), blk)
            lg = _retire(lg, len(lg), blk)
        else:
            idx = max((i for i, e in enumerate(lg) if touched & e.defs and live(e, blk)), default=None)
            if idx is not None:
                wl = min(15, need(lg, idx, blk))
                lg = _retire(lg, idx, blk)
                if wl == 0:
                    smem = _retire(smem, len(smem), blk)
        idx = max((i for i, e in enumerate(vm) if touched & e.defs and live(e, blk)), default=None)
        if idx is not None:
            wv = need(vm, idx, blk)
            vm = _retire(vm, idx, blk)
        if wl is not None or wv is not None:
            w = _wait(wv, wl)
            w.optional = blk
            out.append(w)
        out.append(it)
        if it.tag == 'spin':
            continue
        if it.kind == 'ds':
            lg.append(_Pend(it))
        elif it.kind == 'smem':
            smem.append(_Pend(it))
        elif it.kind in ('vmem', 'dma'):
            vm.append(_Pend(it))
    return out


def _wait(wv, wl):
    s = 's_waitcnt'
    if wv is not None:
        s += ' vmcnt(%d)' % min(wv, 63)
    if wl is not None:
        s += ' lgkmcnt(%d)' % wl
    return Inst(s)


def _states(it, blk=False):
    if it.kind in ('label', 'directive') or (it.optional and it.optional != blk):
        return 0
    if it.kind == 'nop':
        return int(it.text.split(';')[0].split()[1], 0) + 1
    return 1


def required_gap(p, c):
    pd, cu, cd = set(p.defs), set(c.uses), set(c.defs)
    g = 0
    pv = p.kind in ('valu', 'trans')
    cv = c.kind in ('valu', 'trans')
    if p.kind == 'mfma':
        big = 12 if p.passes == 8 else 8
        if c.kind == 'mfma':
            if pd & set(c.srcab):
                g = max(g, big)
            if pd & set(c.srcc):
                if not (c.srcc == p.defs and c.passes == p.passes):
                    g = max(g, big - 2)
            elif pd & cd:
                g = max(g, big)
        elif cv or c.kind in ('ds', 'vmem', 'dma'):
            if pd & (cu | cd):
                g = max(g, big)
        if cv and set(p.srcc) & cd:
            g = max(g, 7 if p.passes == 8 else 3)
    if pv:
        vg = {r for r in pd if r[0] in 'va' and not r.startswith('vcc')}
        sg = pd - vg
        if c.kind == 'mfma' and vg & cu:
            g = max(g, 2)
        if cv and vg & cu:
            if c.dpp or c.op.startswith('v_permlane'):
                g = max(g, 2)
            if c.op.startswith(('v_readlane', 'v_readfirstlane')):
                g = max(g, 1)
            if p.kind == 'trans':
                g = max(g, 1)
        if p.op.startswith('v_dot') and vg & (cu | cd):
            if not (c.op == p.op):
                g = max(g, 3)
        if sg & cu:
            if cv:
                g = max(g, 4 if c.op.startswith(('v_readlane', 'v_writelane')) else 2)
            if c.kind in ('vmem', 'dma'):
                g = max(g, 5)
            if c.kind in ('salu', 'branch', 'smem'):
                g = max(g, 1)
    if p.kind == 'salu' and 'm0' in pd and c.kind == 'dma':
        g = max(g, 1)
    if p.wide_store and set(p.wide_store) & cd and c.kind != 'vmem':
        g = max(g, 2)
    return g


def pad_hazards(items):
    out = []
    nops = 0
    for it in items:
        if it.kind in ('label', 'directive', 'waitcnt', 'barrier', 'nop', 'sleep', 'endpgm', 'setprio', 'spinwait'):
            out.append(it)
            continue
        need = 0
        dist = 0
        for p in reversed(out):
            if dist >= 12:
                break
            if p.kind not in ('label', 'directive', 'waitcnt', 'barrier', 'nop', 'sleep', 'setprio', 'branch', 'spinwait'):
                g = required_gap(p, it)
                if g > dist:
                    need = max(need, g - dist)
            dist += _states(p, it.optional)
        if need:
            out.append(Inst('s_nop %d' % (need - 1), None, it.optional))
            nops += need
        out.append(it)
    return out, nops


def finish(prog):
    items = place_waits(flat(prog.items))
    items = [it for it in items if it.kind != 'touch']
    items, nops = pad_hazards(items)
    lines = []
    for it in items:
        if it.kind == 'label':
            lines.append(it.text)
        else:
            lines.append('  ' + it.text)
    return lines, items, nops
```

```python
import sys, argparse
from contextlib import contextmanager
from asmir import Prog, Inst, Mark, Group, merge, finish, flat, weight

NAME = 'parallel_sum__ssm_conv_s5__dense_activation_silu__prompt'

SLOT = 8192
SM = 19 * SLOT
SM_STAT, SM_CS, SM_TS, SM_E, SM_PART = SM, SM + 1024, SM + 2048, SM + 4096, SM + 6144
SM_DUMMY = SM_PART
LDS_BYTES = 163840
WS_FLAGS, WS_STATS, WS_E, WS_H = 0x1000, 0x8000, 0x10000, 0x80000
H_R2 = 176 * 2048
WS_END = WS_H + 32 * H_R2
WS_STAMP = 0xC00000
OOB = 0x40000000

XSLOT = [10, 13, 16, 0]
ASLOT = [12, 15, 18, 2]
SSLOT = [3, 4, 5, 6, 7, 8, 9, 10]
BSLOT = [11, 12, 13, 14, 15, 16, 17, 18]
TR_BASE = 16 * SLOT
XR_BASE = 18 * SLOT
RED_BASE = 12 * SLOT

T = list(range(0, 24))
vX0, vX1, vW1, vB, vW2 = 24, 25, 26, 27, 28
vA = [29, 30, 31, 32]
vT1 = [33, 34]
vTC, vBC, vHst, vHs = 35, 36, 37, 38
vLr, vLi, vGa, vGb, vL16r, vL16i, vPr, vPi, vL128r, vL128i = range(39, 49)
vNm, vSv, vZc, vCS, vLane, vP, vEo = 49, 50, 51, 52, 53, 54, 55
ACCA, ACCS, XF = 56, 72, 88
NARCH = 216
vPoll, vPollB = vX0, vX1
vAld = vW1
vT2 = vT1
aRING, aCS, aONE = 0, 32, 36

sX, sLre, sLim, sBre, sBim, sCre, sCim, sLdt = 4, 6, 8, 10, 12, 14, 16, 18
sDsk, sOut, sW1, sW2, sWs = 20, 22, 24, 26, 28
SX, SWA, SWB, SB, SW2, SCR, SCI, SWS, SOUT = 32, 36, 40, 44, 48, 52, 56, 60, 64
sK = list(range(68, 76))
sKW = list(range(76, 84))
sW, sRg, sTh, sR, sQ, sJ, sC, sR2, sC2 = range(84, 93)
sW1k, sW2k, sTagA, sTagB = 93, 94, 96, 97
sHa, sHb, sFlag = 95, 98, 99
sT0, sT1, sT2, sT3 = 30, 31, 3, 2
sM0, sM1 = 100, 101
sInv0, sInv1 = 4, 6
sCnt, sAl, sDm = 8, 9, 10
STAMP_T = 28
STAMP_REGS = list(range(11, 20)) + list(range(22, 28)) + list(range(68, 84))


def v(i, n=1):
    return 'v%d' % i if n == 1 else 'v[%d:%d]' % (i, i + n - 1)


def a(i, n=1):
    return 'a%d' % i if n == 1 else 'a[%d:%d]' % (i, i + n - 1)


def s(i, n=1):
    return 's%d' % i if n == 1 else 's[%d:%d]' % (i, i + n - 1)


class Win:
    def __init__(self, regs):
        self.regs = regs
        self.base = 0

    def at(self, p, addr, span):
        if addr < self.base or addr + span - self.base > 65536:
            nb = addr if addr < self.base else max(0, addr + span - 65536 + 0)
            nb = addr - (addr % 1024) if addr >= self.base else addr
            d = nb - self.base
            for r in self.regs:
                p('v_add_u32 %s, %s, %s' % (v(r), hex(d & 0xffffffff), v(r)))
            self.base = nb
        return addr - self.base


class Gen:
    def __init__(self, opt):
        self.o = opt
        self.nlab = 0
        self.nstamp = 0

    def lab(self, name):
        self.nlab += 1
        return 'L%s_%d' % (name, self.nlab)

    @contextmanager
    def skip(self, p, name, *cond):
        l = self.lab(name)
        with p.atomic():
            for c in cond:
                p(c)
            p('s_cbranch_scc1 ' + l)
            with p.atomic(optional=True):
                yield l
            p(l + ':')

    def stamp(self, p, name):
        if not self.o.stamps or (self.o.only and name not in self.o.only.split(',')):
            return
        k = len(self.stamp_names)
        with p.atomic():
            if k:
                p('s_mov_b32 %s, %s' % (s(STAMP_REGS[k - 1]), s(STAMP_T)))
            if name:
                p('s_memtime %s' % s(STAMP_T, 2))
        self.stamp_names.append(name)

    def stamp_out(self, p):
        if not self.o.stamps:
            return
        self.o.only = ''
        self.stamp(p, 'end')
        self.stamp(p, '')
        self.stamp_names.pop()
        p('s_memrealtime %s' % s(STAMP_T, 2))
        p('v_mov_b32 v0, 0')
        for k in range(len(self.stamp_names)):
            p('v_writelane_b32 v0, %s, %d' % (s(STAMP_REGS[k]), k))
        p('v_writelane_b32 v0, %s, 60' % s(STAMP_T))
        p('v_writelane_b32 v0, s2, 61')
        p('s_lshl_b32 %s, %s, 3' % (s(sT0), s(sR2)))
        p('s_add_u32 %s, %s, %s' % (s(sT0), s(sT0), s(sC2)))
        p('s_lshl_b32 %s, %s, 3' % (s(sT0), s(sT0)))
        p('s_add_u32 %s, %s, %s' % (s(sT0), s(sT0), s(sW)))
        p('s_lshl_b32 %s, %s, 8' % (s(sT0), s(sT0)))
        p('s_add_u32 %s, %s, %d' % (s(sT0), s(sT0), WS_STAMP))
        p('v_lshlrev_b32 v1, 2, %s' % v(vLane))
        p('buffer_store_dword v0, v1, %s, %s offen' % (s(SWS, 4), s(sT0)))

    def dma(self, p, voff, srd, soff, lds, wreg, tag, imm=0, pre=None):
        with p.atomic():
            p('s_add_u32 m0, %s, %d' % (s(wreg), lds - imm))
            if pre:
                p(pre)
            p('buffer_load_dwordx4 %s, %s, %s offen%s lds' % (v(voff), s(srd, 4), soff, (' offset:%d' % imm) if imm else ''), tag=tag)

    def dma_chunk(self, i):
        pp = i % 4
        out = []
        for pc in range(2):
            p = Prog()
            self.dma(p, [vX0, vX1][pc], SX, s(sK[i]), XSLOT[pp] * SLOT + pc * 1024, sW2k, 'c%d' % i)
            out.append(p)
        p = Prog()
        self.dma(p, vW1, SWA, s(sKW[i]), ASLOT[pp] * SLOT, sW1k, 'c%d' % i)
        out.append(p)
        return out

    def dma_s(self, i):
        p = Prog()
        self.dma(p, vB, SB, s(sK[i]), SSLOT[i] * SLOT, sW1k, 's%d' % (i // 4))
        return p

    def dma_b(self, i):
        p = Prog()
        self.dma(p, vW1, SWB, s(sKW[i]), BSLOT[i] * SLOT, sW1k, 'b%d' % (i // 4))
        return p

    def dma_B2(self, n):
        g, kg = n // 4, n % 4
        lds = (4 * (g % 4) + kg) * SLOT
        p = Prog()
        if g < 7:
            u = 7 * kg + (2 * g if g < 4 else 2 * (g - 4) + 1)
            self.dma(p, vW2, SW2, s(sDm), lds, sW1k, 'B%d' % g, pre='s_mov_b32 %s, %d' % (s(sDm), u * 65536))
        else:
            pr, part = (g - 7) // 2, (g - 7) % 2
            self.dma(p, vB, [SCR, SCI][part], '0', lds, sW1k, 'B%d' % g, imm=256 * kg + 128 * pr)
        return p

    def bf16r(self, p, dst, src):
        p('v_cvt_pk_bf16_f32 %s, %s, %s' % (v(dst), v(src), v(src)))
        p('v_lshlrev_b32 %s, 16, %s' % (v(dst), v(dst)))

    def cmul_self(self, p, dst, src, cr, ci, add=None):
        if add is None:
            p('v_mul_f32 %s, %s, %s' % (v(dst), v(cr), v(src)))
        else:
            p('v_fma_f32 %s, %s, %s, %s' % (v(dst), v(cr), v(src), v(add)))
        p('v_fmac_f32_dpp %s, %s, %s row_ror:8 row_mask:0xf bank_mask:0xf' % (v(dst), v(src), v(ci)))

    def csq(self, p, dr, di, sr, si, t):
        p('v_mul_f32 %s, %s, %s' % (v(t), v(si), v(si)))
        p('v_mul_f32 %s, %s, %s' % (v(di), v(sr), v(si)))
        p('v_fma_f32 %s, %s, %s, -%s' % (v(dr), v(sr), v(sr), v(t)))
        p('v_add_f32 %s, %s, %s' % (v(di), v(di), v(di)))

    def prologue(self, p):
        o = self.o
        p('s_cmp_ge_u32 s2, 256')
        p('s_cbranch_scc1 L_exit')
        p('s_load_dwordx16 s[4:19], s[0:1], 0')
        p('s_load_dwordx4 s[24:27], s[0:1], 80')
        p('s_load_dwordx2 s[28:29], s[0:1], 112')
        p('s_load_dwordx2 s[20:21], s[0:1], 64')
        p('s_load_dwordx2 s[22:23], s[0:1], 96')
        p('v_lshrrev_b32 v1, 6, v0')
        p('v_and_b32 %s, 63, v0' % v(vLane))
        p('v_readfirstlane_b32 %s, v1' % s(sW))
        p('v_lshlrev_b32 v2, 4, %s' % v(vLane))
        p('s_lshr_b32 %s, s2, 3' % s(sT1))
        if o.stamps:
            p('s_memrealtime s[100:101]')
            p('s_memtime s[98:99]')
        if o.codepf:
            p('s_getpc_b64 s[66:67]')
            p('L_pc:')
            p('s_lshl_b32 %s, %s, 8' % (s(sT0), s(sW)))
            p('s_or_b32 %s, %s, %s' % (s(sT0), s(sT0), s(sT1)))
            with self.skip(p, 'nopf', 's_cmp_ge_u32 %s, (L_end-L_pc)/1024' % s(sT0)):
                p('s_lshl_b32 %s, %s, 10' % (s(sT0), s(sT1)))
                p('v_add_u32 v3, %s, v2' % s(sT0))
                p('s_mov_b32 m0, %d' % SM_DUMMY)
                p('global_load_lds_dwordx4 v3, s[66:67]')
        p('s_and_b32 %s, s2, 7' % s(sT0))
        p('s_and_b32 %s, %s, 1' % (s(sR), s(sT0)))
        p('s_lshl_b32 %s, %s, 3' % (s(sR), s(sR)))
        p('s_lshr_b32 %s, %s, 2' % (s(sT2), s(sT1)))
        p('s_add_u32 %s, %s, %s' % (s(sR), s(sR), s(sT2)))
        p('s_lshr_b32 %s, %s, 1' % (s(sQ), s(sT0)))
        p('s_and_b32 %s, %s, 3' % (s(sJ), s(sT1)))
        p('s_lshl_b32 %s, %s, 2' % (s(sC), s(sQ)))
        p('s_add_u32 %s, %s, %s' % (s(sC), s(sC), s(sJ)))
        p('s_lshl_b32 %s, %s, 2' % (s(sR2), s(sT0)))
        p('s_lshr_b32 %s, %s, 3' % (s(sT2), s(sT1)))
        p('s_add_u32 %s, %s, %s' % (s(sR2), s(sR2), s(sT2)))
        p('s_and_b32 %s, %s, 7' % (s(sC2), s(sT1)))
        p('s_and_b32 %s, %s, 3' % (s(sRg), s(sW)))
        p('s_lshr_b32 %s, %s, 2' % (s(sTh), s(sW)))
        p('s_lshl_b32 %s, %s, 10' % (s(sW1k), s(sW)))
        p('s_lshl_b32 %s, %s, 11' % (s(sW2k), s(sW)))
        p('s_lshl_b32 %s, %s, 1' % (s(sT2), s(sJ)))
        p('s_add_u32 %s, %s, %s' % (s(sT2), s(sT2), s(sR)))
        if not o.rot:
            p('s_mov_b32 %s, 0' % s(sT2))
        for i in range(8):
            p('s_add_u32 %s, %s, %d' % (s(sK[i]), s(sT2), i))
            p('s_and_b32 %s, %s, 7' % (s(sK[i]), s(sK[i])))
            p('s_lshl_b32 %s, %s, 7' % (s(sK[i]), s(sK[i])))
            p('s_mul_i32 %s, %s, 1792' % (s(sKW[i]), s(sK[i])))
        p('v_lshrrev_b32 v3, 3, %s' % v(vLane))
        p('v_and_b32 v4, 7, %s' % v(vLane))
        p('v_lshrrev_b32 v5, 1, v3')
        p('v_xor_b32 v6, v4, v5')
        p('v_lshlrev_b32 v6, 4, v6')
        p('v_lshrrev_b32 v7, 2, v3')
        p('v_lshlrev_b32 v7, 4, v7')
        p('v_and_b32 v8, 3, v3')
        p('v_add_u32 v7, v7, v8')
        p('v_lshl_add_u32 %s, v7, 10, v6' % v(vX0))
        p('s_lshl_b32 %s, %s, 7' % (s(sT0), s(sR)))
        p('s_lshr_b32 %s, %s, 1' % (s(sT1), s(sW)))
        p('s_lshl_b32 %s, %s, 5' % (s(sT1), s(sT1)))
        p('s_add_u32 %s, %s, %s' % (s(sT0), s(sT0), s(sT1)))
        p('s_and_b32 %s, %s, 1' % (s(sT1), s(sW)))
        p('s_lshl_b32 %s, %s, 3' % (s(sT2), s(sT1)))
        p('s_add_u32 %s, %s, %s' % (s(sT0), s(sT0), s(sT2)))
        p('s_lshl_b32 %s, %s, 10' % (s(sT0), s(sT0)))
        p('v_add_u32 %s, %s, %s' % (v(vX0), s(sT0), v(vX0)))
        p('v_xor_b32 %s, 64, %s' % (v(vX1), v(vX0)))
        p('v_add_u32 %s, 0x1000, %s' % (v(vX1), v(vX1)))
        p('s_lshl_b32 %s, %s, 6' % (s(sT1), s(sT1)))
        p('v_lshl_add_u32 %s, v3, 10, v6' % v(vB))
        p('v_xor_b32 %s, %s, %s' % (v(vB), s(sT1), v(vB)))
        p('v_and_b32 v5, 1, v5')
        p('v_lshlrev_b32 v5, 2, v5')
        p('v_xor_b32 v5, v4, v5')
        p('v_lshlrev_b32 v5, 4, v5')
        p('v_lshl_add_u32 %s, v3, 10, v5' % v(vW2))
        p('s_lshl_b32 %s, %s, 3' % (s(sT0), s(sW)))
        p('v_add_u32 v6, %s, v3' % s(sT0))
        p('v_mul_u32_u24 v6, 3584, v6')
        p('v_add_u32 %s, v6, v5' % v(vW1))
        p('s_mul_i32 %s, %s, 7' % (s(sT0), s(sQ)))
        p('s_lshl_b32 %s, %s, 1' % (s(sT1), s(sJ)))
        p('s_add_u32 %s, %s, %s' % (s(sT0), s(sT0), s(sT1)))
        p('s_lshl_b32 %s, %s, 7' % (s(sT0), s(sT0)))
        p('s_mov_b32 %s, 2097152' % s(SX + 2))
        p('s_mov_b32 %s, 0x20000' % s(SX + 3))
        p('s_sub_u32 %s, 1835008, %s' % (s(SWA + 2), s(sT0)))
        p('s_mov_b32 %s, 0x20000' % s(SWA + 3))
        p('s_mov_b32 %s, %s' % (s(SX), s(sX)))
        p('s_mov_b32 %s, %s' % (s(SX + 1), s(sX + 1)))
        p('s_add_u32 %s, %s, %s' % (s(SWA), s(sW1), s(sT0)))
        p('s_addc_u32 %s, %s, 0' % (s(SWA + 1), s(sW1 + 1)))
        p('s_load_dwordx2 %s, %s, 0' % (s(sTagA, 2), s(sWs, 2)))
        for q in self.dma_chunk(0):
            p.extend(q)
        p('s_barrier')
        p('v_and_b32 v9, 31, %s' % v(vLane))
        p('v_lshrrev_b32 v10, 4, v9')
        p('v_lshlrev_b32 v10, 3, v10')
        p('v_add_u32 v10, v10, v4')
        p('s_lshl_b32 %s, %s, 5' % (s(sT1), s(sC)))
        p('s_lshl_b32 %s, %s, 4' % (s(sT2), s(sTh)))
        p('s_add_u32 %s, %s, %s' % (s(sT1), s(sT1), s(sT2)))
        p('v_add_u32 v11, %s, v10' % s(sT1))
        p('v_lshlrev_b32 v11, 1, v11')
        p('global_load_ushort %s, v11, %s' % (v(vGa), s(sLre, 2)))
        p('global_load_ushort %s, v11, %s' % (v(vGb), s(sLim, 2)))
        p('global_load_ushort %s, v11, %s' % (v(vLr), s(sLdt, 2)))
        for q in self.dma_chunk(1):
            p.extend(q)
        p('s_barrier')
        for q in self.dma_chunk(2):
            p.extend(q)
        p('s_add_u32 %s, %s, 128' % (s(SWB), s(SWA)))
        p('s_addc_u32 %s, %s, 0' % (s(SWB + 1), s(SWA + 1)))
        p('s_sub_u32 %s, %s, 128' % (s(SWB + 2), s(SWA + 2)))
        p('s_cmp_eq_u32 %s, 3' % s(sJ))
        p('s_cselect_b32 %s, 0, %s' % (s(SWB + 2), s(SWB + 2)))
        p('s_mov_b32 %s, 0x20000' % s(SWB + 3))
        p('s_lshr_b32 %s, %s, 1' % (s(sT0), s(sRg)))
        p('s_lshl_b32 %s, %s, 3' % (s(sT0), s(sT0)))
        p('s_add_u32 %s, %s, %s' % (s(sT0), s(sT0), s(sT1)))
        p('s_lshl_b32 %s, %s, 10' % (s(sT0), s(sT0)))
        p('s_bitcmp1_b32 %s, 0' % s(sW))
        p('s_cselect_b32 %s, %s, %s' % (s(SB), s(sBim), s(sBre)))
        p('s_cselect_b32 %s, %s, %s' % (s(SB + 1), s(sBim + 1), s(sBre + 1)))
        p('s_add_u32 %s, %s, %s' % (s(SB), s(SB), s(sT0)))
        p('s_addc_u32 %s, %s, 0' % (s(SB + 1), s(SB + 1)))
        p('s_sub_u32 %s, 524288, %s' % (s(SB + 2), s(sT0)))
        p('s_mov_b32 %s, 0x20000' % s(SB + 3))
        p('s_lshl_b32 %s, %s, 13' % (s(sT0), s(sW)))
        p('s_lshl_b32 %s, %s, 7' % (s(sT1), s(sC2)))
        p('s_add_u32 %s, %s, %s' % (s(sT1), s(sT1), s(sT0)))
        p('s_add_u32 %s, %s, %s' % (s(SW2), s(sW2), s(sT1)))
        p('s_addc_u32 %s, %s, 0' % (s(SW2 + 1), s(sW2 + 1)))
        p('s_sub_u32 %s, 1835008, %s' % (s(SW2 + 2), s(sT1)))
        p('s_mov_b32 %s, 0x20000' % s(SW2 + 3))
        p('s_lshl_b32 %s, %s, 16' % (s(sT1), s(sC2)))
        p('s_add_u32 %s, %s, %s' % (s(sT1), s(sT1), s(sT0)))
        for srd, ptr in ((SCR, sCre), (SCI, sCim)):
            p('s_add_u32 %s, %s, %s' % (s(srd), s(ptr), s(sT1)))
            p('s_addc_u32 %s, %s, 0' % (s(srd + 1), s(ptr + 1)))
            p('s_sub_u32 %s, 524288, %s' % (s(srd + 2), s(sT1)))
            p('s_mov_b32 %s, 0x20000' % s(srd + 3))
        p('s_mov_b32 %s, %s' % (s(SWS), s(sWs)))
        p('s_mov_b32 %s, %s' % (s(SWS + 1), s(sWs + 1)))
        p('s_mov_b32 %s, %d' % (s(SWS + 2), WS_STAMP + 0x80000 if o.stamps else WS_END))
        p('s_mov_b32 %s, 0x20000' % s(SWS + 3))
        p('s_mov_b32 %s, %s' % (s(SOUT), s(sOut)))
        p('s_mov_b32 %s, %s' % (s(SOUT + 1), s(sOut + 1)))
        p('s_mov_b32 %s, 4194304' % s(SOUT + 2))
        p('s_mov_b32 %s, 0x20000' % s(SOUT + 3))
        if o.warm:
            p('s_lshl_b32 %s, s2, 3' % s(sT0))
            p('s_add_u32 %s, %s, %s' % (s(sT0), s(sT0), s(sW)))
            p('s_mov_b32 m0, %d' % SM_DUMMY)
            with self.skip(p, 'w1', 's_cmp_ge_u32 %s, 1792' % s(sT0)):
                p('s_lshl_b32 %s, %s, 10' % (s(sT0), s(sT0)))
                p('v_add_u32 v12, %s, v2' % s(sT0))
                p('global_load_lds_dwordx4 v12, %s' % s(sW2, 2))
            with self.skip(p, 'w2', 's_cmp_ge_u32 %s, 4' % s(sW)):
                p('s_and_b32 %s, s2, 127' % s(sT0))
                p('s_lshl_b32 %s, %s, 2' % (s(sT0), s(sT0)))
                p('s_add_u32 %s, %s, %s' % (s(sT0), s(sT0), s(sW)))
                p('s_lshl_b32 %s, %s, 10' % (s(sT0), s(sT0)))
                p('v_add_u32 v12, %s, v2' % s(sT0))
                p('s_cmp_ge_u32 s2, 128')
                p('s_cselect_b32 %s, %s, %s' % (s(sT0), s(sCim), s(sCre)))
                p('s_cselect_b32 %s, %s, %s' % (s(sT1), s(sCim + 1), s(sCre + 1)))
                p('global_load_lds_dwordx4 v12, %s' % s(sT0, 2))
        p('v_lshlrev_b32 v12, 2, v0')
        p('v_add_u32 v12, %d, v12' % SM_STAT)
        p('v_mov_b32 v13, 0')
        p('ds_write_b32 v12, v13')
        p('v_lshrrev_b32 v13, 5, %s' % v(vLane))
        p('v_lshrrev_b32 v14, 1, v9')
        p('v_and_b32 v14, 7, v14')
        p('v_xor_b32 v14, v13, v14')
        p('v_lshlrev_b32 v14, 4, v14')
        p('v_lshl_add_u32 v14, v9, 7, v14')
        p('s_lshl_b32 %s, %s, 6' % (s(sT0), s(sTh)))
        p('v_xor_b32 v14, %s, v14' % s(sT0))
        p('s_lshl_b32 %s, %s, 12' % (s(sT0), s(sRg)))
        p('v_add_u32 %s, %s, v14' % (v(vA[0]), s(sT0)))
        for k in range(1, 4):
            p('v_xor_b32 %s, %d, %s' % (v(vA[k]), 32 * k, v(vA[0])))
        p('v_bfe_u32 v15, %s, 2, 2' % v(vLane))
        p('v_and_b32 v16, 3, %s' % v(vLane))
        p('v_lshrrev_b32 v17, 4, %s' % v(vLane))
        p('v_lshrrev_b32 v18, 1, v15')
        p('v_lshlrev_b32 v18, 2, v18')
        p('v_and_b32 v19, 1, v16')
        p('v_lshlrev_b32 v19, 3, v19')
        p('v_lshrrev_b32 v16, 1, v16')
        p('v_and_b32 v20, 1, v17')
        p('v_lshl_add_u32 v20, v20, 1, v16')
        p('s_lshl_b32 %s, %s, 2' % (s(sT0), s(sTh)))
        p('v_add_u32 v20, %s, v20' % s(sT0))
        p('v_xor_b32 v20, v20, v18')
        p('v_lshl_add_u32 v20, v20, 4, v19')
        p('v_lshl_add_u32 v21, v13, 3, v15')
        p('v_lshl_add_u32 v20, v21, 7, v20')
        p('s_lshl_b32 %s, %s, 12' % (s(sT0), s(sTh)))
        p('v_add_u32 %s, %s, v20' % (v(vT1[0]), s(sT0)))
        p('s_sub_u32 %s, 4096, %s' % (s(sT1), s(sT0)))
        p('v_add_u32 %s, %s, v20' % (v(vT1[1]), s(sT1)))
        p('s_lshl_b32 %s, %s, 1' % (s(sT1), s(sRg)))
        p('v_add_u32 v20, %s, v16' % s(sT1))
        p('v_xor_b32 v20, v20, v18')
        p('v_lshl_add_u32 v20, v20, 4, v19')
        p('v_lshl_add_u32 v21, v17, 3, v15')
        p('v_lshl_add_u32 v20, v21, 7, v20')
        p('v_add_u32 %s, %s, v20' % (v(vTC), s(sT0)))
        p('v_and_b32 v20, 15, %s' % v(vLane))
        p('v_lshrrev_b32 v21, 1, v20')
        p('s_lshl_b32 %s, %s, 2' % (s(sT1), s(sTh)))
        p('v_add_u32 v22, %s, v17' % s(sT1))
        p('v_xor_b32 v21, v21, v22')
        p('v_lshlrev_b32 v21, 4, v21')
        p('v_lshl_add_u32 v21, v20, 7, v21')
        p('s_lshl_b32 %s, %s, 11' % (s(sT1), s(sRg)))
        p('v_add_u32 %s, %s, v21' % (v(vBC), s(sT1)))
        p('s_lshl_b32 %s, %s, 1' % (s(sT0), s(sR)))
        p('s_lshr_b32 %s, %s, 1' % (s(sT1), s(sRg)))
        p('s_add_u32 %s, %s, %s' % (s(sT0), s(sT0), s(sT1)))
        p('s_mul_i32 %s, %s, %d' % (s(sT0), s(sT0), H_R2))
        p('s_and_b32 %s, %s, 1' % (s(sT1), s(sRg)))
        p('s_lshl_b32 %s, %s, 10' % (s(sT1), s(sT1)))
        p('s_add_u32 %s, %s, %s' % (s(sT0), s(sT0), s(sT1)))
        p('s_add_u32 %s, %s, %d' % (s(sT0), s(sT0), WS_H))
        p('v_add_u32 %s, %s, v2' % (v(vHs), s(sT0)))
        p('v_bfe_u32 v20, v9, 2, 1')
        p('v_lshlrev_b32 v20, 4, v20')
        p('v_lshrrev_b32 v21, 3, v9')
        p('v_lshl_add_u32 v20, v21, 2, v20')
        p('v_and_b32 v21, 3, v9')
        p('v_add_u32 %s, v20, v21' % v(vEo))
        p('v_lshl_add_u32 v20, v13, 5, %s' % v(vEo))
        p('v_lshlrev_b32 v20, 4, v20')
        p('v_add_u32 %s, %s, v20' % (v(vHst), s(sT0)))
        if o.stamps:
            p('s_mov_b32 %s, s98' % s(STAMP_T))
            p('s_mov_b32 s2, s100')
            self.stamp_names.append('start')
        p('s_mul_i32 %s, %s, 44' % (s(sHa), s(sQ)))
        p('s_lshl_b32 %s, %s, 2' % (s(sT0), s(sJ)))
        p('s_add_u32 %s, %s, %s' % (s(sHa), s(sHa), s(sT0)))
        p('s_lshl_b32 %s, %s, 1' % (s(sT0), s(sTh)))
        p('s_add_u32 %s, %s, %s' % (s(sHa), s(sHa), s(sT0)))
        p('s_lshl_b32 %s, %s, 11' % (s(sHa), s(sHa)))
        p('s_add_u32 %s, %s, %d' % (s(sHb), s(sHa), 16 * 2048))
        p('s_mul_i32 %s, %s, 12' % (s(sFlag), s(sR)))
        p('s_add_u32 %s, %s, %s' % (s(sFlag), s(sFlag), s(sQ)))
        p('s_lshl_b32 %s, %s, 7' % (s(sFlag), s(sFlag)))
        p('s_lshl_b32 %s, %s, 3' % (s(sT0), s(sJ)))
        p('s_add_u32 %s, %s, %s' % (s(sFlag), s(sFlag), s(sT0)))
        p('s_add_u32 %s, %s, %d' % (s(sFlag), s(sFlag), WS_FLAGS))
        p('s_lshl_b32 %s, %s, 7' % (s(sT0), s(sTh)))
        p('v_lshlrev_b32 v20, 4, v13')
        p('v_add_u32 v20, %s, v20' % s(sT0))
        p('v_add_u32 %s, %d, v20' % (v(vCS), SM_CS))
        p('v_mov_b32 v20, 0x3f803f80')
        for k in range(4):
            p('v_accvgpr_write_b32 %s, v20' % a(aONE + k))
        p('v_mov_b32 %s, 0' % v(vNm))
        p('v_mov_b32 %s, 0' % v(vSv))
        p('s_add_u32 %s, %s, 1' % (s(sTagA), s(sTagA)))
        p('s_add_u32 %s, %s, 1' % (s(sTagB), s(sTagB)))
        p('s_mov_b32 %s, 0x3f803f80' % s(sM0))

    def lambda_code(self):
        p = Prog()
        p('v_lshlrev_b32 %s, 16, %s' % (v(vGa), v(vGa)))
        p('v_lshlrev_b32 %s, 16, %s' % (v(vGb), v(vGb)))
        p('v_lshlrev_b32 v0, 16, %s' % v(vLr))
        p('v_mul_f32 v0, 0x3fb8aa3b, v0')
        p('v_exp_f32 v0, v0')
        self.bf16r(p, 0, 0)
        p('v_mul_f32 v1, v0, %s' % v(vGa))
        p('v_mul_f32 v2, v0, %s' % v(vGb))
        p('v_mul_f32 v1, 0x3fb8aa3b, v1')
        p('v_mul_f32 v2, 0.15915494, v2')
        p('v_exp_f32 v1, v1')
        p('v_rndne_f32 v3, v2')
        p('v_sub_f32 v2, v2, v3')
        p('v_cos_f32 v3, v2')
        p('v_sin_f32 v4, v2')
        p('v_mul_f32 v5, %s, %s' % (v(vGa), v(vGa)))
        p('v_fma_f32 v5, %s, %s, v5' % (v(vGb), v(vGb)))
        p('v_rcp_f32 v5, v5')
        p('v_mul_f32 %s, v1, v3' % v(vLr))
        p('v_mul_f32 v4, v1, v4')
        p('v_add_f32 v6, -1.0, %s' % v(vLr))
        p('v_mul_f32 v7, v6, %s' % v(vGa))
        p('v_fma_f32 v7, v4, %s, v7' % v(vGb))
        p('v_mul_f32 v8, v4, %s' % v(vGa))
        p('v_fma_f32 v8, -v6, %s, v8' % v(vGb))
        p('v_add_f32 v5, v5, v5')
        p('v_mul_f32 v7, v7, v5')
        p('v_mul_f32 %s, -v8, v5' % v(vGb))
        p('v_and_b32 v9, 8, %s' % v(vLane))
        p('v_lshlrev_b32 v9, 28, v9')
        p('v_xor_b32 %s, v7, v9' % v(vGa))
        p('v_xor_b32 v9, 0x80000000, v9')
        p('v_xor_b32 %s, v4, v9' % v(vLi))
        self.csq(p, 0, 1, vLr, vLi, 10)
        self.csq(p, 2, 3, 0, 1, 10)
        self.csq(p, 0, 1, 2, 3, 10)
        self.csq(p, vL16r, vL16i, 0, 1, 10)
        self.csq(p, 0, 1, vL16r, vL16i, 10)
        self.csq(p, 2, 3, 0, 1, 10)
        self.csq(p, vL128r, vL128i, 2, 3, 10)
        p('v_cmp_lt_u32 vcc, 31, %s' % v(vLane))
        p('v_cndmask_b32 %s, 1.0, %s, vcc' % (v(vPr), v(vL16r)))
        p('v_cndmask_b32 %s, 0, %s, vcc' % (v(vPi), v(vL16i)))
        for bit, (cr, ci) in ((0, (0, 1)), (1, (2, 3))):
            with p.atomic():
                p('s_bitcmp1_b32 %s, %d' % (s(sRg), bit))
                p('s_cselect_b64 vcc, -1, 0')
            p('v_cndmask_b32 v4, 1.0, %s, vcc' % v(cr))
            p('v_cndmask_b32 v5, 0, %s, vcc' % v(ci))
            p('v_mul_f32 v6, %s, v5' % v(vPi))
            p('v_mul_f32 v7, %s, v5' % v(vPr))
            p('v_fma_f32 %s, %s, v4, v7' % (v(vPi), v(vPi)))
            p('v_fma_f32 %s, %s, v4, -v6' % (v(vPr), v(vPr)))
        return p

    def colsum_out(self, p, unit):
        p('v_accvgpr_read_b32 v16, %s' % a(aCS))
        p('v_and_b32 v17, 15, %s' % v(vLane))
        p('v_lshlrev_b32 v17, 2, v17')
        p('v_lshl_add_u32 v17, %s, 6, v17' % s(sRg))
        p('v_add_u32 v17, %d, v17' % (SM_CS + 256 * unit))
        with p.atomic():
            p('s_mov_b64 exec, 0xffff')
            p('ds_add_f32 v17, v16')
            p('s_mov_b64 exec, -1')

    def pass1(self, p):
        wA, wT, wC = self.wA, self.wT, self.wC
        CF = [16, 20]
        later = [self.dma_s(i) for i in range(8)] + [self.dma_b(i) for i in range(4)]

        def reads(i):
            q = Prog()
            pp = i % 4
            ox = wA.at(q, XSLOT[pp] * SLOT, 2 * SLOT)
            ot = wT.at(q, ASLOT[pp] * SLOT, SLOT)
            oc = wC.at(q, ASLOT[pp] * SLOT, SLOT)
            for k in range(4):
                q('ds_read_b128 %s, %s offset:%d' % (v(XF + 16 * i + 4 * k, 4), v(vA[k]), ox))
                for jj in range(2):
                    q('ds_read_b64_tr_b16 %s, %s offset:%d' % (a(aRING + 16 * (i % 2) + 4 * k + 2 * jj, 2), v(vT1[k // 2]), ot + (k % 2) * 2048 + jj * 512))
            for jj in range(2):
                q('ds_read_b64_tr_b16 %s, %s offset:%d' % (v(CF[i % 2] + 2 * jj, 2), v(vTC), oc + jj * 512))
            return q

        def compute(i, dmas, side):
            q = Prog()
            dmas = list(dmas)
            for k in range(4):
                c = '0' if (i == 0 and k == 0) else v(ACCA, 16)
                q('v_mfma_f32_32x32x16_bf16 %s, %s, %s, %s' % (v(ACCA, 16), a(aRING + 16 * (i % 2) + 4 * k, 4), v(XF + 16 * i + 4 * k, 4), c))
                if dmas:
                    q.extend(dmas.pop(0))
            q('v_mfma_f32_16x16x32_bf16 %s, %s, %s, %s' % (a(aCS, 4), a(aONE, 4), v(CF[i % 2], 4), '0' if i == 0 else a(aCS, 4)))
            if side is not None:
                q = merge(q, side)
            for k in range(8):
                x = v(XF + 16 * i + k)
                q('v_dot2_f32_bf16 %s, %s, %s, %s' % (v(vNm), x, s(sM0), v(vNm)))
                q('v_dot2_f32_bf16 %s, %s, %s, %s' % (v(vSv), x, x, v(vSv)))
            return q

        lam = self.lambda_code().items
        nl = (len(lam) + 3) // 4
        for e in range(9):
            dm = self.dma_chunk(e + 3) if e < 5 else later[3 * (e - 5):3 * (e - 5) + 3]
            if e < 8:
                p.wait_vm('c%d' % e)
                p.wait_lgkm0()
                p('s_barrier')
                self.stamp(p, 'c%d' % e)
                p.extend(reads(e))
            if e == 0:
                for q in dm:
                    p.extend(q)
            else:
                side = lam[nl * (e - 2):nl * (e - 1)] if 2 <= e < 6 else None
                p.extend(compute(e - 1, dm, side))
        p('v_mov_b32 v0, %s' % v(vNm))
        p('v_mov_b32 v1, %s' % v(vSv))
        p('v_and_b32 v2, 31, %s' % v(vLane))
        p('v_lshlrev_b32 v2, 3, v2')
        p('s_lshl_b32 %s, %s, 8' % (s(sT0), s(sRg)))
        p('v_permlane32_swap_b32 v0, %s' % v(vNm))
        p('v_permlane32_swap_b32 v1, %s' % v(vSv))
        p('v_add_u32 v2, %s, v2' % s(sT0))
        p('v_add_u32 %s, %d, v2' % (v(vZc), SM_STAT))
        p('v_add_f32 v0, v0, %s' % v(vNm))
        p('v_add_f32 v1, v1, %s' % v(vSv))
        p('s_mov_b32 exec_hi, 0')
        p('ds_add_f32 %s, v0' % v(vZc))
        p('ds_add_f32 %s, v1 offset:4' % v(vZc))
        p('s_mov_b32 exec_hi, -1')
        self.colsum_out(p, 0)
        p('s_sub_u32 %s, %s, %s' % (s(sT0), s(sTh), s(sRg)))
        p('s_lshl_b32 %s, %s, 12' % (s(sT0), s(sT0)))
        for k in range(4):
            p('v_add_u32 %s, %s, %s' % (v(vA[k]), s(sT0), v(vA[k])))
        p.wait_vm('s0')
        p.wait_lgkm0()
        p('s_barrier')
        self.stamp(p, 'X')

    def stats_code(self):
        p = Prog()
        p('ds_read_b64 v[0:1], %s' % v(vZc))
        p('v_mul_f32 v0, 0x3b000000, v0')
        p('v_mul_f32 v1, 0x3b000000, v1')
        p('v_fma_f32 v1, -v0, v0, v1')
        p('v_max_f32 v1, 0, v1')
        self.bf16r(p, 2, 0)
        self.bf16r(p, 1, 1)
        p('v_add_f32 v1, 0x3727c5ac, v1')
        self.bf16r(p, 1, 1)
        p('v_sqrt_f32 v1, v1')
        p('v_xor_b32 %s, 0x80000000, v2' % v(vNm))
        self.bf16r(p, vSv, 1)
        p('v_rcp_f32 v3, %s' % v(vSv))
        p('v_lshlrev_b32 v4, 2, %s' % v(vEo))
        p('v_lshl_add_u32 v4, %s, 8, v4' % s(sW))
        p('v_add_u32 v4, %d, v4' % SM_TS)
        p('v_mul_f32 %s, 0xbfb8aa3b, v3' % v(vZc))
        p('ds_write_b32 v4, %s' % v(vNm))
        p('ds_write_b32 v4, v3 offset:128')
        with self.skip(p, 'st', 's_or_b32 %s, %s, %s' % (s(sT0), s(sC), s(sTh))):
            p('s_lshl_b32 %s, %s, 2' % (s(sT0), s(sR)))
            p('s_add_u32 %s, %s, %s' % (s(sT0), s(sT0), s(sRg)))
            p('s_lshl_b32 %s, %s, 8' % (s(sT0), s(sT0)))
            p('s_add_u32 %s, %s, %d' % (s(sT0), s(sT0), WS_STATS))
            p('v_lshlrev_b32 v4, 3, %s' % v(vEo))
            p('s_mov_b32 exec_hi, 0')
            p('buffer_store_dwordx2 v[2:3], v4, %s, %s offen sc1' % (s(SWS, 4), s(sT0)), tag='Ha')
            p('s_mov_b32 exec_hi, -1')
        return p

    def silu_code(self, unit, soff, tag):
        p = Prog()
        CS = [0, 4]
        TT = 8
        p('ds_read_b128 %s, %s offset:%d' % (v(CS[0], 4), v(vCS), 256 * unit))
        for j4 in range(4):
            if j4 < 3:
                p('ds_read_b128 %s, %s offset:%d' % (v(CS[(j4 + 1) % 2], 4), v(vCS), 256 * unit + 32 * (j4 + 1)))
            A = ACCA + 4 * j4
            for i in range(4):
                p('v_fma_f32 %s, %s, %s, %s' % (v(A + i), v(vNm), v(CS[j4 % 2] + i), v(A + i)))
            for i in range(4):
                p('v_mul_f32 %s, %s, %s' % (v(TT + i), v(vZc), v(A + i)))
            for i in range(4):
                p('v_exp_f32 %s, %s' % (v(TT + i), v(TT + i)))
            for i in range(4):
                p('v_fma_f32 %s, %s, %s, %s' % (v(TT + i), v(TT + i), v(vSv), v(vSv)))
            for i in range(4):
                p('v_rcp_f32 %s, %s' % (v(TT + i), v(TT + i)))
            for i in range(4):
                p('v_mul_f32 %s, %s, %s' % (v(A + i), v(A + i), v(TT + i)))
            D = ACCA + 8 * (j4 // 2) + 2 * (j4 % 2)
            p('v_cvt_pk_bf16_f32 %s, %s, %s' % (v(D), v(A), v(A + 1)))
            p('v_cvt_pk_bf16_f32 %s, %s, %s' % (v(D + 1), v(A + 2), v(A + 3)))
            if j4 % 2:
                u = j4 // 2
                p('buffer_store_dwordx4 %s, %s, %s, %s offen offset:%d sc1' % (v(ACCA + 8 * u, 4), v(vHst), s(SWS, 4), s(soff), 2048 * u), tag=tag)
        return p

    def flag(self, p, kind):
        with self.skip(p, 'fl', 's_cmp_lg_u32 %s, 0' % s(sW)):
            p('v_mov_b32 v22, %s' % s(sTagA))
            p('v_mov_b32 v23, %s' % s(sTagB))
            p('s_mov_b64 exec, 1')
            p('buffer_store_dwordx2 v[22:23], off, %s, %s offset:%d sc1' % (s(SWS, 4), s(sFlag), 512 * kind))
            p('s_mov_b64 exec, -1')

    def scan1_code(self):
        p = Prog()
        p('v_and_b32 v0, 31, %s' % v(vLane))
        p('v_lshlrev_b32 v0, 2, v0')
        p('v_lshl_add_u32 v1, %s, 7, v0' % s(sTh))
        p('v_add_u32 v1, %d, v1' % (SM_CS + 256))
        p('ds_read_b32 v1, v1')
        p('v_lshrrev_b32 v2, 5, %s' % v(vLane))
        p('v_lshlrev_b32 v3, 6, v2')
        p('v_lshl_add_u32 v3, %s, 8, v3' % s(sW))
        p('v_add_u32 v3, %d, v3' % SM_TS)
        p('v_lshl_add_u32 v0, %s, 10, v0' % s(sTh))
        p('v_add_u32 %s, %d, v0' % (v(vP), SM_E))
        p('v_lshl_add_u32 %s, v2, 7, %s' % (v(vEo), v(vP)))
        p('v_lshl_add_u32 %s, %s, 8, %s' % (v(vEo), s(sRg), v(vEo)))
        for jq in range(4):
            p('ds_read_b128 v[4:7], v3 offset:%d' % (16 * jq))
            p('ds_read_b128 v[8:11], v3 offset:%d' % (128 + 16 * jq))
            for i in range(4):
                p('v_fma_f32 %s, %s, v1, %s' % (v(ACCS + 4 * jq + i), v(4 + i), v(ACCS + 4 * jq + i)))
            for i in range(4):
                p('v_mul_f32 %s, %s, %s' % (v(ACCS + 4 * jq + i), v(8 + i), v(ACCS + 4 * jq + i)))
        prev = ACCS
        for q in range(1, 16):
            d = 12 + q % 2
            self.cmul_self(p, d, prev, vLr, vLi, add=ACCS + q)
            prev = d
        p('ds_write_b32 %s, %s' % (v(vEo), v(prev)))
        return p

    def combine_code(self):
        p = Prog()
        for k in range(4):
            p('ds_read2_b32 %s, %s offset0:%d offset1:%d' % (v(2 * k, 2), v(vP), 64 * k, 64 * k + 32))
        p('v_lshrrev_b32 v8, 5, %s' % v(vLane))
        p('v_lshl_add_u32 v8, %s, 1, v8' % s(sRg))
        p('v_mov_b32 %s, 0' % v(vP))
        prev = 0
        for sg in range(1, 8):
            p('v_cmp_eq_u32 vcc, %d, v8' % sg)
            p('v_cndmask_b32 %s, %s, %s, vcc' % (v(vP), v(vP), v(prev)))
            self.cmul_self(p, sg, prev, vL16r, vL16i, add=sg)
            prev = sg
        p('v_mov_b32 v8, v7')
        p('v_mov_b32 v9, %s' % s(sTagA))
        p('v_mov_b32 v10, %s' % s(sTagB))
        p('v_mov_b32 v11, 0')
        p('v_lshlrev_b32 v12, 4, %s' % v(vLane))
        with self.skip(p, 'ep', 's_cmp_lg_u32 %s, 0' % s(sRg)):
            p('s_lshl_b32 %s, %s, 4' % (s(sT0), s(sR)))
            p('s_add_u32 %s, %s, %s' % (s(sT0), s(sT0), s(sC)))
            p('s_lshl_b32 %s, %s, 1' % (s(sT0), s(sT0)))
            p('s_add_u32 %s, %s, %s' % (s(sT0), s(sT0), s(sTh)))
            p('s_lshl_b32 %s, %s, 9' % (s(sT0), s(sT0)))
            p('s_add_u32 %s, %s, %d' % (s(sT0), s(sT0), WS_E))
            p('s_mov_b32 exec_hi, 0')
            p('buffer_store_dwordx4 v[8:11], v12, %s, %s offen sc1' % (s(SWS, 4), s(sT0)))
            p('s_mov_b32 exec_hi, -1')
        return p

    def poll_setup(self):
        p = Prog()
        p('s_lshr_b32 %s, %s, 1' % (s(sCnt), s(sR2)))
        p('s_mul_i32 %s, %s, 12' % (s(sCnt), s(sCnt)))
        p('s_add_u32 %s, %s, %s' % (s(sCnt), s(sCnt), s(sRg)))
        p('s_lshl_b32 %s, %s, 7' % (s(sCnt), s(sCnt)))
        p('s_add_u32 %s, %s, %d' % (s(sCnt), s(sCnt), WS_FLAGS))
        p('v_and_b32 %s, 3, %s' % (v(vPoll), v(vLane)))
        p('v_min_u32 %s, 2, %s' % (v(vPollB), v(vPoll)))
        p('v_lshl_add_u32 %s, %s, 3, %s' % (v(vPoll), v(vPoll), s(sCnt)))
        p('v_lshl_add_u32 %s, %s, 3, %s' % (v(vPollB), v(vPollB), s(sCnt)))
        return p

    def poll_issue(self, p, kind, dst):
        p('buffer_load_dwordx2 %s, %s, %s, 0 offen offset:%d sc1' % (v(dst, 2), v(vPollB if kind == 1 else vPoll), s(SWS, 4), 512 * kind))

    def spin(self, p, top, done, loads):
        with p.atomic(optional=True):
            p('s_sub_u32 %s, %s, 1' % (s(sCnt), s(sCnt)))
            p('s_cbranch_scc1 ' + done)
            for l in loads:
                p(l, tag='spin')
            p('s_waitcnt vmcnt(0)')
            p.items[-1].kind = 'spinwait'
            p('s_branch ' + top)

    def poll_check(self, p, kind, dst):
        top, done = self.lab('pl'), self.lab('pd')
        with p.atomic():
            p('s_mov_b32 %s, 0x4000' % s(sCnt))
            p('v_mov_b32 %s, %s' % (v(dst), v(dst)))
            p.items[-1].kind = 'touch'
            p(top + ':')
            p('v_cmp_eq_u32 vcc, %s, %s' % (s(sTagA), v(dst)))
            p('v_cmp_eq_u32 %s, %s, %s' % (s(sT0, 2), s(sTagB), v(dst + 1)))
            p('s_and_b64 vcc, vcc, %s' % s(sT0, 2))
            p('s_cmp_eq_u64 vcc, -1')
            p('s_cbranch_scc1 ' + done)
            self.spin(p, top, done, ['buffer_load_dwordx2 %s, %s, %s, 0 offen offset:%d sc1' % (v(dst, 2), v(vPollB if kind == 1 else vPoll), s(SWS, 4), 512 * kind)])
            p(done + ':')

    def pass23(self, p):
        wA, wT, wC, wB = self.wA, self.wT, self.wC, self.wB
        CF = [16, 20]
        BAR = self.o.bars
        PD = 7

        def rd(q, k):
            i, sp = (k % 32) // 4, k % 4
            dst = aRING + 4 * (k % 8)
            if k < 32:
                o = wA.at(q, SSLOT[i] * SLOT, SLOT)
                q('ds_read_b128 %s, %s offset:%d' % (a(dst, 4), v(vA[sp]), o))
            else:
                o = wT.at(q, BSLOT[i] * SLOT, SLOT)
                for jj in range(2):
                    q('ds_read_b64_tr_b16 %s, %s offset:%d' % (a(dst + 2 * jj, 2), v(vT1[sp // 2]), o + (sp % 2) * 2048 + jj * 512))

        def mm(q, k):
            kk = k % 32
            acc = ACCS if k < 32 else ACCA
            c = '0' if kk == 0 else v(acc, 16)
            w, x = a(aRING + 4 * (k % 8), 4), v(XF + 4 * kk, 4)
            A, B = (x, w) if k < 32 else (w, x)
            q('v_mfma_f32_32x32x16_bf16 %s, %s, %s, %s' % (v(acc, 16), A, B, c))

        def colsum(unit, i0):
            q = Prog()
            for i in range(i0, i0 + 4):
                if unit == 1:
                    o = wB.at(q, SSLOT[i] * SLOT, SLOT)
                    q('ds_read_b128 %s, %s offset:%d' % (v(CF[i % 2], 4), v(vBC), o))
                else:
                    o = wC.at(q, BSLOT[i] * SLOT, SLOT)
                    for jj in range(2):
                        q('ds_read_b64_tr_b16 %s, %s offset:%d' % (v(CF[i % 2] + 2 * jj, 2), v(vTC), o + jj * 512))
                if i > i0:
                    q('v_mfma_f32_16x16x32_bf16 %s, %s, %s, %s' % (a(aCS, 4), a(aONE, 4), v(CF[(i - 1) % 2], 4), '0' if i == 1 else a(aCS, 4)))
            q('v_mfma_f32_16x16x32_bf16 %s, %s, %s, %s' % (a(aCS, 4), a(aONE, 4), v(CF[(i0 + 3) % 2], 4), a(aCS, 4)))
            if i0 == 4:
                self.colsum_out(q, unit)
            return q

        lim = [16, 32, 48, 64]
        segs = []
        nread = 0
        k = 0
        for n in range(4):
            q = Prog()
            end = BAR[n]
            first = True
            while k < end:
                while nread < min(lim[n], k + PD + 1) and nread < k + 8:
                    rd(q, nread)
                    nread += 1
                mm(q, k)
                k += 1
            assert nread == lim[n], (n, nread)
            segs.append(q)
        big = lambda it: isinstance(it, Inst) and it.kind == 'mfma' and it.passes == 8
        sil = self.silu_code(0, sHa, 'Ha').items
        st = self.stats_code().items
        ve = st + sil
        n0 = len(ve) * BAR[0] // 31
        n1 = len(ve) * BAR[1] // 31

        def spread(*progs):
            out = []
            for q in progs:
                out.extend(q.items if isinstance(q, Prog) else q)
            return out

        def two(seg, dmas, cs, valu, tail=None):
            seg = merge(seg, valu, after=big) if valu else seg
            nb = sum(1 for it in seg.items if big(it))
            items = []
            extra = [d.items for d in dmas]
            if cs is not None:
                seg = merge(seg, cs, after=big, start=0, end=max(1, nb - 2))
            out = Prog()
            j = 0
            for it in seg.items:
                out.items.append(it)
                if big(it):
                    if j < len(extra):
                        out.items.extend(extra[j])
                    j += 1
            assert j >= len(extra)
            return out

        d0 = [self.dma_b(i) for i in range(4, 8)] + [self.dma_B2(n) for n in range(3)]
        p.extend(two(segs[0], d0, colsum(1, 0), ve[:n0]))
        p.wait_vm('s1')
        p.wait_lgkm0()
        p('s_barrier')
        self.stamp(p, 'P2m')
        p.extend(two(segs[1], [self.dma_B2(n) for n in range(3, 7)], colsum(1, 4), ve[n0:n1]))
        p.wait_vm('b0')
        p.wait_lgkm0()
        p('s_barrier')
        self.stamp(p, 'P2e')
        seg = segs[2]
        na = 32 - BAR[1]
        seg = merge(seg, ve[n1:] + self.poll_setup().items, after=big, start=0, end=na - 1)
        seg = merge(seg, self.scan1_code(), after=big, start=na + 1)
        p.extend(two(seg, [self.dma_B2(n) for n in range(7, 11)], colsum(2, 0), None))
        p.wait_vm('b1', 'Ha')
        p.wait_lgkm0()
        p('s_barrier')
        self.stamp(p, 'P3m')
        self.flag(p, 0)
        seg = merge(segs[3], self.combine_code(), after=big, start=1, end=10)
        q = Prog()
        self.poll_issue(q, 0, 14)
        seg = merge(seg, q, after=big, start=64 - BAR[2] - 2, end=64 - BAR[2] - 1)
        p.extend(two(seg, [self.dma_B2(n) for n in range(11, 15)], colsum(2, 4), None))
        p.wait_vm('B0', 'B1')
        p.wait_lgkm0()
        p('s_barrier')
        self.stamp(p, 'P3e')

    def a_load(self, p, st):
        if st % 2 == 0:
            p('s_mov_b32 %s, %d' % (s(sAl), st * 2048))
        p('buffer_load_dwordx4 %s, %s, %s, %s offen offset:%d sc1' % (v(XF + 4 * (st % 24), 4), v(vAld), s(SWS, 4), s(sAl), (st % 2) * 2048))

    def gemm2_setup(self, p):
        p('v_and_b32 v0, 31, %s' % v(vLane))
        p('s_lshl_b32 %s, %s, 3' % (s(sT0), s(sRg)))
        p('v_add_u32 v1, %s, v0' % s(sT0))
        p('v_and_b32 v1, 31, v1')
        p('v_and_b32 v2, 32, %s' % v(vLane))
        p('v_add_u32 v1, v1, v2')
        p('s_mul_i32 %s, %s, %d' % (s(sT0), s(sR2), H_R2))
        p('s_mul_i32 %s, %s, %d' % (s(sT1), s(sRg), 44 * 2048))
        p('s_add_u32 %s, %s, %s' % (s(sT0), s(sT0), s(sT1)))
        p('s_lshl_b32 %s, %s, 10' % (s(sT1), s(sTh)))
        p('s_add_u32 %s, %s, %s' % (s(sT0), s(sT0), s(sT1)))
        p('s_add_u32 %s, %s, %d' % (s(sT0), s(sT0), WS_H))
        p('v_lshl_add_u32 %s, v1, 4, %s' % (v(vAld), s(sT0)))

    def gemm2_setup2(self):
        p = Prog()
        p('v_bfe_u32 v0, %s, 2, 2' % v(vLane))
        p('v_bfe_u32 v1, %s, 1, 1' % v(vLane))
        p('v_bfe_u32 v2, %s, 4, 1' % v(vLane))
        p('v_lshl_add_u32 v1, v2, 1, v1')
        p('v_lshrrev_b32 v2, 1, v0')
        p('v_lshlrev_b32 v2, 2, v2')
        p('v_xor_b32 v1, v1, v2')
        p('v_and_b32 v2, 1, %s' % v(vLane))
        p('v_lshlrev_b32 v2, 3, v2')
        p('v_lshl_add_u32 v1, v1, 4, v2')
        p('v_lshrrev_b32 v2, 5, %s' % v(vLane))
        p('v_lshl_add_u32 v0, v2, 2, v0')
        p('v_lshl_add_u32 v1, v0, 7, v1')
        p('s_lshl_b32 %s, %s, 13' % (s(sT0), s(sRg)))
        p('v_add_u32 %s, %s, v1' % (v(vT2[0]), s(sT0)))
        p('v_xor_b32 %s, 64, %s' % (v(vT2[1]), v(vT2[0])))
        p('v_and_b32 v0, 31, %s' % v(vLane))
        p('v_bfe_u32 v1, %s, 1, 3' % v(vLane))
        p('v_xor_b32 v1, v1, v2')
        p('v_lshlrev_b32 v1, 4, v1')
        p('v_lshl_add_u32 v1, v0, 7, v1')
        p('v_add_u32 %s, %s, v1' % (v(vA[0]), s(sT0)))
        for k in range(1, 4):
            p('v_xor_b32 %s, %d, %s' % (v(vA[k]), 32 * k, v(vA[0])))
        self.w2 = Win(vT2)
        self.wc = Win(vA)
        return p

    def g2_read(self, q, st):
        g, sp = st // 4, st % 4
        dst = XF + 96 + 8 * (st % 4)
        base = 4 * (g % 4) * SLOT
        if g < 7:
            o = self.w2.at(q, base, 4 * SLOT)
            for nt in range(2):
                for jj in range(2):
                    q('ds_read_b64_tr_b16 %s, %s offset:%d' % (v(dst + 4 * nt + 2 * jj, 2), v(vT2[nt]), o + sp * 2048 + jj * 1024))
        else:
            o = self.wc.at(q, base, 4 * SLOT)
            for nt in range(2):
                q('ds_read_b128 %s, %s offset:%d' % (v(dst + 4 * nt, 4), v(vA[sp]), o + nt * 4096))

    def g2_mm(self, q, st):
        for nt in range(2):
            c = '0' if st == 0 else a(16 * nt, 16)
            q('v_mfma_f32_32x32x16_bf16 %s, %s, %s, %s' % (a(16 * nt, 16), v(XF + 4 * (st % 24), 4), v(XF + 96 + 8 * (st % 4) + 4 * nt, 4), c))

    def g2_run(self, k0, k1, rlim):
        q = Prog()
        for k in range(k0, k1):
            while self.g2r < min(rlim, k + 4):
                self.g2_read(q, self.g2r)
                self.g2r += 1
            self.g2_mm(q, k)
        return q

    def lookback_issue(self, p):
        p('v_lshrrev_b32 v0, 5, %s' % v(vLane))
        p('s_lshl_b32 %s, %s, 1' % (s(sT0), s(sRg)))
        p('v_add_u32 v0, %s, v0' % s(sT0))
        p('v_lshlrev_b32 v0, 1, v0')
        p('s_sub_u32 %s, %s, 1' % (s(sT0), s(sR)))
        p('s_lshl_b32 %s, %s, 4' % (s(sT0), s(sT0)))
        p('s_add_u32 %s, %s, %s' % (s(sT0), s(sT0), s(sC)))
        p('s_lshl_b32 %s, %s, 1' % (s(sT0), s(sT0)))
        p('s_add_u32 %s, %s, %s' % (s(sT0), s(sT0), s(sTh)))
        p('s_lshl_b32 %s, %s, 9' % (s(sT0), s(sT0)))
        p('s_add_u32 %s, %s, %d' % (s(sT0), s(sT0), WS_E))
        p('v_and_b32 v1, 31, %s' % v(vLane))
        p('v_lshl_add_u32 v1, v1, 4, %s' % s(sT0))
        p('v_lshlrev_b32 v2, 14, v0')
        p('v_sub_u32 v1, v1, v2')
        p('v_subrev_u32 v2, 0x4000, v1')
        p('v_mov_b32 v3, %d' % OOB)
        p('v_cmp_le_u32 %s, %s, v0' % (s(sInv0, 2), s(sR)))
        p('v_add_u32 v0, 1, v0')
        p('v_cmp_le_u32 %s, %s, v0' % (s(sInv1, 2), s(sR)))
        p('v_cndmask_b32 %s, v1, v3, %s' % (v(vTC), s(sInv0, 2)))
        p('v_cndmask_b32 %s, v2, v3, %s' % (v(vBC), s(sInv1, 2)))
        p('buffer_load_dwordx3 v[16:18], %s, %s, 0 offen sc1' % (v(vTC), s(SWS, 4)))
        p('buffer_load_dwordx3 v[20:22], %s, %s, 0 offen sc1' % (v(vBC), s(SWS, 4)))

    def lookback_check(self, p):
        top, done = self.lab('ll'), self.lab('ld')
        p('s_mov_b32 %s, 0x4000' % s(sCnt))
        p('v_mov_b32 v22, v22')
        p.items[-1].kind = 'touch'
        p(top + ':')
        p('v_cmp_eq_u32 vcc, %s, v17' % s(sTagA))
        p('v_cmp_eq_u32 %s, %s, v18' % (s(sT0, 2), s(sTagB)))
        p('s_and_b64 vcc, vcc, %s' % s(sT0, 2))
        p('s_or_b64 %s, vcc, %s' % (s(sM0, 2), s(sInv0, 2)))
        p('v_cmp_eq_u32 vcc, %s, v21' % s(sTagA))
        p('v_cmp_eq_u32 %s, %s, v22' % (s(sT0, 2), s(sTagB)))
        p('s_and_b64 vcc, vcc, %s' % s(sT0, 2))
        p('s_or_b64 vcc, vcc, %s' % s(sInv1, 2))
        p('s_and_b64 vcc, vcc, %s' % s(sM0, 2))
        p('s_cmp_eq_u64 vcc, -1')
        p('s_cbranch_scc1 ' + done)
        self.spin(p, top, done, ['buffer_load_dwordx3 v[16:18], %s, %s, 0 offen sc1' % (v(vTC), s(SWS, 4)),
                                 'buffer_load_dwordx3 v[20:22], %s, %s, 0 offen sc1' % (v(vBC), s(SWS, 4))])
        p(done + ':')
        self.cmul_self(p, 16, 20, vL128r, vL128i, add=16)
        p('ds_write_b32 %s, v16 offset:%d' % (v(vEo), SM_PART - SM_E))

    def scan2_code(self):
        p = Prog()
        p('v_and_b32 v8, 31, %s' % v(vLane))
        p('v_lshlrev_b32 v9, 2, v8')
        p('s_lshl_b32 %s, %s, 10' % (s(sT0), s(sTh)))
        p('v_add_u32 v9, %s, v9' % s(sT0))
        p('v_add_u32 v9, %d, v9' % SM_PART)
        for k in range(4):
            p('ds_read2_b32 %s, v9 offset0:%d offset1:%d' % (v(2 * k, 2), 64 * k, 64 * k + 32))
        self.csq(p, 10, 11, vL128r, vL128i, 12)
        p('v_bfe_u32 v12, v8, 3, 1')
        p('v_lshlrev_b32 v12, 4, v12')
        p('v_and_b32 v13, 7, v8')
        p('v_add_u32 v12, v12, v13')
        p('v_lshrrev_b32 v13, 4, v8')
        p('v_lshl_add_u32 v12, v13, 3, v12')
        p('v_lshlrev_b32 v12, 6, v12')
        p('v_and_b32 v13, 32, %s' % v(vLane))
        p('v_add_u32 v12, v12, v13')
        p('s_add_u32 %s, %s, %d' % (s(sT0), s(sW2k), TR_BASE))
        p('v_add_u32 v12, %s, v12' % s(sT0))
        p('v_lshrrev_b32 v13, 5, %s' % v(vLane))
        p('v_bfe_u32 v14, %s, 2, 2' % v(vLane))
        p('v_lshl_add_u32 v13, v13, 3, v14')
        p('v_lshlrev_b32 v13, 6, v13')
        p('v_bfe_u32 v14, %s, 4, 1' % v(vLane))
        p('v_lshl_add_u32 v13, v14, 5, v13')
        p('v_and_b32 v14, 3, %s' % v(vLane))
        p('v_lshl_add_u32 v13, v14, 3, v13')
        p('v_add_u32 v13, %s, v13' % s(sT0))
        for sg in range(6, -1, -1):
            self.cmul_self(p, sg, sg + 1, 10, 11, add=sg)
        self.cmul_self(p, vP, 0, vPr, vPi, add=vP)
        prev = vP
        for q in range(16):
            self.cmul_self(p, ACCS + q, prev, vLr, vLi, add=ACCS + q)
            prev = ACCS + q
            if q >= 1:
                self.cmul_self(p, ACCA + q - 1, ACCS + q - 1, vGa, vGb)
        self.cmul_self(p, ACCA + 15, ACCS + 15, vGa, vGb)
        for k in range(8):
            p('v_cvt_pk_bf16_f32 %s, %s, %s' % (v(k), v(ACCA + 2 * k), v(ACCA + 2 * k + 1)))
        p('ds_write_b128 v12, v[0:3]')
        p('ds_write_b128 v12, v[4:7] offset:16')
        p.wait_lgkm0()
        for part in range(2):
            for jj in range(2):
                p('ds_read_b64_tr_b16 %s, v13 offset:%d' % (v(ACCA + 4 * part + 2 * jj, 2), 1024 * part + 256 * jj))
        p('s_mul_i32 %s, %s, 44' % (s(sT0), s(sQ)))
        p('s_lshr_b32 %s, %s, 1' % (s(sT1), s(sJ)))
        p('s_lshl_b32 %s, %s, 3' % (s(sT1), s(sT1)))
        p('s_add_u32 %s, %s, %s' % (s(sT0), s(sT0), s(sT1)))
        p('s_and_b32 %s, %s, 1' % (s(sT1), s(sJ)))
        p('s_lshl_b32 %s, %s, 1' % (s(sT1), s(sT1)))
        p('s_add_u32 %s, %s, %s' % (s(sT0), s(sT0), s(sT1)))
        p('s_add_u32 %s, %s, %s' % (s(sT0), s(sT0), s(sTh)))
        p('s_add_u32 %s, %s, 28' % (s(sT0), s(sT0)))
        p('s_lshl_b32 %s, %s, 11' % (s(sT0), s(sT0)))
        p('s_add_u32 %s, %s, 8192' % (s(sT1), s(sT0)))
        for part in range(2):
            p('buffer_store_dwordx4 %s, %s, %s, %s offen sc1' % (v(ACCA + 4 * part, 4), v(vHs), s(SWS, 4), s([sT0, sT1][part])), tag='Hs')
        return p

    def tail_gemm2(self, p):
        big = lambda it: isinstance(it, Inst) and it.kind == 'mfma'
        self.g2r = 0
        p.extend(self.dma_B2(15))
        self.gemm2_setup(p)
        self.poll_check(p, 0, 14)
        self.stamp(p, 'polla')
        for st in range(8):
            self.a_load(p, st)
        with self.skip(p, 'light', 's_cmp_eq_u32 %s, 3' % s(sJ)):
            p.extend(self.silu_code(2, sHb, 'Hb'))
        self.stamp(p, 'silub')
        self.lookback_issue(p)
        for st in range(8, 16):
            self.a_load(p, st)
        p('v_lshrrev_b32 v0, 3, %s' % v(vLane))
        p('v_and_b32 v1, 7, %s' % v(vLane))
        p('v_lshlrev_b32 v1, 4, v1')
        p('v_lshl_add_u32 v0, v0, 10, v1')
        p('s_lshl_b32 %s, %s, 16' % (s(sT0), s(sR2)))
        p('s_lshl_b32 %s, %s, 13' % (s(sT1), s(sW)))
        p('s_add_u32 %s, %s, %s' % (s(sT0), s(sT0), s(sT1)))
        p('s_lshl_b32 %s, %s, 7' % (s(sT1), s(sC2)))
        p('s_add_u32 %s, %s, %s' % (s(sT0), s(sT0), s(sT1)))
        self.dma(p, 0, SX, s(sT0), XR_BASE, sW1k, 'XR')
        p.extend(self.gemm2_setup2())
        p.extend(self.g2_run(0, 8, 8))
        self.stamp(p, 'e01')
        self.lookback_check(p)
        p.wait_vm('B2', 'B3', 'Hb')
        p.wait_lgkm0()
        p('s_barrier')
        self.stamp(p, 'Y')
        self.flag(p, 1)
        for n in range(16, 24):
            p.extend(self.dma_B2(n))
        p.extend(self.scan2_code())
        self.poll_issue(p, 1, 14)
        self.stamp(p, 'scan2')
        p.extend(self.g2_run(8, 14, 16))
        self.poll_check(p, 1, 14)
        for st in range(16, 24):
            self.a_load(p, st)
        p.extend(self.g2_run(14, 16, 16))
        for st in range(24, 28):
            self.a_load(p, st)
        p.wait_vm('B4', 'B5', 'Hs')
        p.wait_lgkm0()
        p('s_barrier')
        self.stamp(p, 'Z')
        self.flag(p, 2)
        p('v_and_b32 v0, 31, %s' % v(vLane))
        p('s_lshl_b32 %s, %s, 6' % (s(sT0), s(sC2)))
        p('v_add_u32 v1, %s, v0' % s(sT0))
        p('v_lshlrev_b32 v2, 1, v1')
        p('global_load_ushort %s, v2, %s' % (v(vGa), s(sDsk, 2)))
        p('global_load_ushort %s, v2, %s offset:64' % (v(vGb), s(sDsk, 2)))
        p('s_lshl_b32 %s, %s, 6' % (s(sT0), s(sR2)))
        p('s_lshl_b32 %s, %s, 5' % (s(sT1), s(sTh)))
        p('s_add_u32 %s, %s, %s' % (s(sT0), s(sT0), s(sT1)))
        p('s_lshl_b32 %s, %s, 3' % (s(sT1), s(sRg)))
        p('s_add_u32 %s, %s, %s' % (s(sT0), s(sT0), s(sT1)))
        p('v_lshrrev_b32 v3, 5, %s' % v(vLane))
        p('v_lshl_add_u32 v3, v3, 2, %s' % s(sT0))
        p('v_lshlrev_b32 v4, 3, v3')
        p('v_add_u32 v4, %d, v4' % WS_STATS)
        p('buffer_load_dwordx4 %s, v4, %s, 0 offen sc1' % (v(ACCS, 4), s(SWS, 4)))
        p('buffer_load_dwordx4 %s, v4, %s, 0 offen offset:16 sc1' % (v(ACCS + 4, 4), s(SWS, 4)))
        p('v_lshlrev_b32 v4, 11, v3')
        p('v_lshl_add_u32 %s, v1, 2, v4' % v(vHst))
        p('v_and_b32 v3, 63, v3')
        p('v_lshlrev_b32 v3, 7, v3')
        p('v_lshl_add_u32 v3, v0, 1, v3')
        p('v_add_u32 %s, %d, v3' % (v(vHs), XR_BASE))
        d = [self.dma_B2(n) for n in range(24, 32)]
        q = self.g2_run(16, 22, 24)
        out = Prog()
        for it in q.items:
            out.items.append(it)
            if big(it) and d:
                out.extend(d.pop(0))
        p.extend(out)
        self.poll_issue(p, 2, 14)
        p.extend(self.g2_run(22, 24, 24))
        p.wait_vm('B6', 'B7')
        p.wait_lgkm0()
        p('s_barrier')
        self.stamp(p, 'e5')
        self.poll_check(p, 2, 14)
        for st in range(28, 36):
            self.a_load(p, st)
        d = [self.dma_B2(n) for n in range(32, 40)]
        q = self.g2_run(24, 28, 32)
        out = Prog()
        for it in q.items:
            out.items.append(it)
            if big(it) and d:
                out.extend(d.pop(0))
        p.extend(out)
        for st in range(36, 44):
            self.a_load(p, st)
        p.extend(self.g2_run(28, 32, 32))
        p.wait_vm('B8', 'B9')
        p.wait_lgkm0()
        p('s_barrier')
        self.stamp(p, 'e7')
        p('s_lshl_b32 %s, %s, 3' % (s(sT0), s(sR2)))
        p('s_add_u32 %s, %s, %s' % (s(sT0), s(sT0), s(sC2)))
        p('s_lshl_b32 %s, %s, 3' % (s(sT0), s(sT0)))
        p('s_add_u32 %s, %s, %s' % (s(sT0), s(sT0), s(sW)))
        with self.skip(p, 'nn', 's_cmp_lg_u32 %s, %d' % (s(sT0), 255 * 8)):
            p('v_mov_b32 v22, %s' % s(sTagA))
            p('v_mov_b32 v23, %s' % s(sTagB))
            p('s_mov_b64 exec, 1')
            p('buffer_store_dwordx2 v[22:23], off, %s, 0 sc1' % s(SWS, 4))
            p('s_mov_b64 exec, -1')
        for n in range(40, 44):
            p.extend(self.dma_B2(n))
        p.extend(self.g2_run(32, 38, 40))
        p.wait_vm('B10', 'XR')
        p.wait_lgkm0()
        p('s_barrier')
        self.stamp(p, 'e9')
        q = self.g2_run(38, 44, 44)
        side = Prog()
        for i in range(4):
            for nt in range(2):
                side('ds_read_u16 %s, %s offset:%d' % (v(ACCA + 2 * i + nt), v(vHs), 128 * i + 64 * nt))
        side('v_lshlrev_b32 v0, 4, %s' % v(vLane))
        side('s_mul_i32 %s, %s, 24576' % (s(sT0), s(sTh)))
        side('s_add_u32 %s, %s, %d' % (s(sT0), s(sT0), RED_BASE))
        side('v_add_u32 v0, %s, v0' % s(sT0))
        for dd in range(4):
            side('s_add_u32 %s, %s, %d' % (s(sT1), s(sRg), dd))
            side('s_and_b32 %s, %s, 3' % (s(sT1), s(sT1)))
            side('s_mul_i32 %s, %s, 6144' % (s(sT1), s(sT1)))
            side('v_add_u32 %s, %s, v0' % (v(1 + dd), s(sT1)))
        side('v_lshlrev_b32 %s, 16, %s' % (v(vGa), v(vGa)))
        side('v_lshlrev_b32 %s, 16, %s' % (v(vGb), v(vGb)))
        for i in range(4):
            for nt in range(2):
                x = ACCA + 2 * i + nt
                side('v_lshlrev_b32 %s, 16, %s' % (v(x), v(x)))
                side('v_sub_f32 v5, %s, %s' % (v(x), v(ACCS + 2 * i)))
                side('v_mul_f32 v6, %s, %s' % (v(ACCS + 2 * i + 1), v([vGa, vGb][nt])))
                side('v_fma_f32 %s, v5, v6, %s' % (v(x), v(x)))
        p.extend(merge(q, side, after=big))
        for dd in range(1, 4):
            for nt in range(2):
                p('ds_write_b128 %s, %s offset:%d' % (v(1 + dd), a(16 * nt + 4 * dd, 4), (dd - 1) * 2048 + nt * 1024))
        for nt in range(2):
            for i in range(4):
                p('v_accvgpr_read_b32 %s, %s' % (v(8 + 4 * nt + i), a(16 * nt + i)))
                p('v_add_f32 %s, %s, %s' % (v(ACCA + 2 * i + nt), v(ACCA + 2 * i + nt), v(8 + 4 * nt + i)))
        p.wait_lgkm0()
        p('s_barrier')
        self.stamp(p, 'red')
        for dd in range(3):
            for nt in range(2):
                p('ds_read_b128 %s, v1 offset:%d' % (v(XF + 8 * dd + 4 * nt, 4), dd * 2048 + nt * 1024))
        p('s_mov_b32 %s, 4096' % s(sT0))
        for nt in range(2):
            for i in range(4):
                x = ACCA + 2 * i + nt
                for dd in range(3):
                    p('v_add_f32 %s, %s, %s' % (v(x), v(x), v(XF + 8 * dd + 4 * nt + i)))
                p('buffer_store_dword %s, %s, %s, %s offen offset:%d' % (v(x), v(vHst), s(SOUT, 4), s(sT0) if i >= 2 else '0', (i % 2) * 2048 + nt * 128))

    def build(self):
        o = self.o
        self.stamp_names = []
        self.wA, self.wT, self.wC, self.wB = Win(vA), Win(vT1), Win([vTC]), Win([vBC])
        p = Prog()
        self.prologue(p)
        self.pass1(p)
        self.pass23(p)
        self.tail_gemm2(p)
        self.stamp_out(p)
        p('L_exit:')
        p('s_endpgm')
        p('L_end:')
        lines, items, nops = finish(p)
        return lines, items, nops


HEADER = open('cdna_kernels/%s.s.ref' % NAME).read().split('; @launch')[0]


def emit(opt):
    g = Gen(opt)
    lines, items, nops = g.build()
    txt = HEADER
    txt += '; @launch grid=(256,1,1) block=(512,1,1) lds=%d\n' % LDS_BYTES
    txt += '.amdgcn_target "amdgcn-amd-amdhsa--gfx950"\n.text\n.globl %s_kernel\n.p2align 8\n.type %s_kernel,@function\n%s_kernel:\n' % (NAME, NAME, NAME)
    txt += '\n'.join(lines) + '\n'
    txt += '''.section .rodata,"a"
.p2align 6
.amdhsa_kernel %s_kernel
  .amdhsa_next_free_vgpr 256
  .amdhsa_next_free_sgpr 102
  .amdhsa_accum_offset %d
  .amdhsa_group_segment_fixed_size 0
  .amdhsa_kernarg_size 120
  .amdhsa_user_sgpr_count 2
  .amdhsa_user_sgpr_kernarg_segment_ptr 1
  .amdhsa_system_sgpr_workgroup_id_x 1
.end_amdhsa_kernel
''' % (NAME, NARCH)
    return txt, items, nops, g


if __name__ == '__main__':
    ap = argparse.ArgumentParser()
    ap.add_argument('-o', default='cdna_kernels/%s.s' % NAME)
    ap.add_argument('--stamps', type=int, default=0)
    ap.add_argument('--only', default='')
    ap.add_argument('--codepf', type=int, default=1)
    ap.add_argument('--warm', type=int, default=1)
    ap.add_argument('--rot', type=int, default=1)
    ap.add_argument('--bars', type=lambda x: [int(y) for y in x.split(',')], default=[11, 27, 44, 64])
    opt = ap.parse_args()
    txt, items, nops, g = emit(opt)
    open(opt.o, 'w').write(txt)
    from collections import Counter
    print(len(items), 'instructions; hazard nops', nops, dict(Counter(i.kind for i in items)))
```

```python
import numpy as np
import gen, refnp


def rel(a, b):
    return float(np.abs(a - b).max() / (np.abs(b).max() + 1e-30)), float(np.sqrt(np.mean(np.abs(a - b) ** 2) / np.mean(np.abs(b) ** 2)))


def h_matrix(ws):
    raw = ws[gen.WS_H:gen.WS_H + 32 * gen.H_R2].view(np.uint16).reshape(32, 176, 2, 2, 32, 8)
    return refnp.from_bits(raw).transpose(0, 2, 4, 1, 3, 5).reshape(2048, 176, 16)


def check(out, ws, ref, d):
    out = out.reshape(2048, 512)
    st = ws[gen.WS_STATS:gen.WS_STATS + 2048 * 8].view(np.float32).reshape(2048, 2)
    print('stats mean', rel(st[:, 0], ref['m'][:, 0]), '1/s', rel(st[:, 1], 1 / ref['sd'][:, 0]))
    E = ws[gen.WS_E:gen.WS_E + 16 * 16 * 2 * 512].view(np.float32).reshape(16, 16, 2, 32, 4)[..., 0]
    E = E.reshape(16, 16, 2, 2, 2, 8)
    Ec = (E[..., 0, :] + 1j * E[..., 1, :]).reshape(16, 512)
    hs, lb = ref['hs'], ref['lb']
    loc = np.stack([hs[128 * r + 127] - (lb ** 128 * hs[128 * r - 1] if r else 0) for r in range(16)])
    print('E', rel(Ec, loc))
    H = h_matrix(ws).reshape(2048, 4, 44, 16)
    act = ref['act']
    hh, ee = np.meshgrid(np.arange(2), np.arange(8), indexing='ij')
    col = (8 * (ee >> 2) + 4 * hh + (ee & 3)).reshape(-1)
    ea = eb = 0
    for q in range(4):
        for j in range(4):
            for sp in range(4):
                ea = max(ea, rel(H[:, q, 4 * j + sp], act[:, 64 * (7 * q + 2 * j) + 16 * sp + col])[1])
                if j < 3:
                    eb = max(eb, rel(H[:, q, 16 + 4 * j + sp], act[:, 64 * (7 * q + 2 * j + 1) + 16 * sp + col])[1])
    print('H ffn a', ea, 'b', eb)
    u = 2 * hs * ref['g']
    es = 0
    for q in range(4):
        for j in range(4):
            for th in range(2):
                for part in range(2):
                    st_ = 28 + 8 * (j >> 1) + 2 * (j & 1) + th + 4 * part
                    p0 = 32 * (4 * q + j) + 16 * th
                    want = (u.real if part == 0 else -u.imag)[:, p0:p0 + 16]
                    es = max(es, rel(H[:, q, st_], want)[1])
    print('H ssm', es)
    o = ref['out']
    print('out rel(max, rms)', rel(out, o), 'nan', int(np.isnan(out).sum()))
    bad = np.abs(out - o) > 0.02 * np.abs(o).max()
    print('bad elements', int(bad.sum()), np.argwhere(bad)[:5].tolist())
```

```python
import re, sys, subprocess, numpy as np
from asmir import Inst, regs_of

U32 = np.uint32
F32 = np.float32
SREG = {'vcc_lo': 106, 'vcc_hi': 107, 'm0': 124, 'exec_lo': 126, 'exec_hi': 127}
LANE = np.arange(64, dtype=np.uint32)
INF = 30000


def f2u(x):
    return np.ascontiguousarray(x, dtype=F32).view(U32)


def u2f(x):
    return np.ascontiguousarray(x).view(F32)


def bf16_round(f):
    u = f2u(f).astype(np.uint64)
    r = ((u + 0x7fff + ((u >> 16) & 1)) >> 16).astype(U32) & 0xffff
    return r


class Mem:
    def __init__(self):
        self.names, self.bases, self.sizes, self.offs = [], [], [], []
        self.parts = []
        self.total = 0

    def add(self, name, arr):
        b = np.ascontiguousarray(arr).view(np.uint8).reshape(-1)
        k = len(self.names)
        base = ((0x7100 + 16 * k) << 32) | (0xffffe000 if k % 2 else 0x12340000)
        self.names.append(name); self.bases.append(base); self.sizes.append(len(b)); self.offs.append(self.total)
        pad = (-len(b)) % 256
        self.parts.append(b); self.parts.append(np.zeros(pad, np.uint8))
        self.total += len(b) + pad
        return base

    def seal(self):
        self.data = np.concatenate(self.parts)
        self.d32 = self.data.view(U32)
        self.d16 = self.data.view(np.uint16)
        self.b = np.array(self.bases, np.int64); self.sz = np.array(self.sizes, np.int64); self.of = np.array(self.offs, np.int64)

    def view(self, name, dtype):
        k = self.names.index(name)
        return self.data[self.offs[k]:self.offs[k] + self.sizes[k]].view(dtype)

    def resolve(self, addr, nbytes, mask, what):
        k = np.searchsorted(self.b, addr, side='right') - 1
        kk = np.clip(k, 0, len(self.b) - 1)
        off = addr - self.b[kk]
        bad = mask & ((k < 0) | (off < 0) | (off + nbytes > self.sz[kk]))
        if bad.any():
            w, l = np.argwhere(bad)[0]
            raise RuntimeError('MEMORY FAULT %s: wave %d lane %d addr %x (%s+%d)' % (what, w, l, addr[w, l], self.names[kk[w, l]], off[w, l]))
        return np.where(mask, off + self.of[kk], 0), kk


class Emu:
    def __init__(self, text, mem, kernarg_base, nwg=256, wpw=8, lds=163840, syms=None, race_wgs=None, wgmap=None, seed=1, ws_info=None):
        self.mem = mem
        self.nwg, self.wpw = nwg, wpw
        NW = self.NW = nwg * wpw
        rng = np.random.default_rng(seed)
        self.V = [None] * 512
        self.junk = rng.integers(0, 2 ** 32, (NW, 64), dtype=U32)
        self.vinit = np.zeros(512, bool)
        self.S = rng.integers(0, 2 ** 32, (128, NW), dtype=U32)
        self.scc = np.zeros(NW, bool)
        self.lds = rng.integers(0, 2 ** 32, (nwg, lds // 4), dtype=U32)
        self.ldsb = lds
        self.wg = (np.arange(NW) // wpw)
        self.wv = (np.arange(NW) % wpw)
        ids = np.arange(nwg) if wgmap is None else np.asarray(wgmap)
        self.S[0] = kernarg_base & 0xffffffff
        self.S[1] = kernarg_base >> 32
        self.S[2] = ids[self.wg]
        self.S[126] = self.S[127] = 0xffffffff
        self.V[0] = (self.wv[:, None] * 64 + LANE[None, :]).astype(U32)
        self.act = np.ones(NW, bool)
        self.wait_label = np.full(NW, -1)
        self.syms = syms or {}
        self.ins = []
        self.labels = {}
        for line in text.split('\n'):
            t = line.split(';')[0].strip()
            if not t or t.startswith('.'):
                if t.startswith('.section'):
                    break
                continue
            it = Inst(t)
            if it.kind == 'label':
                self.labels[t[:-1]] = len(self.ins)
            self.ins.append(it)
        self.vm, self.lg = [], []
        self.epoch = 0
        self.errors = {}
        self.rw = np.array(sorted(race_wgs if race_wgs is not None else [0, 1, 27, 120, 255]))
        self.rw = self.rw[self.rw < nwg]
        n = len(self.rw)
        self.rwaves = (self.rw[:, None] * wpw + np.arange(wpw)[None, :]).reshape(-1)
        W = lds // 4
        self.w_ep = np.full((n, W), -1, np.int16); self.w_wave = np.full((n, W), -1, np.int8)
        self.w_atomic = np.zeros((n, W), bool)
        self.r_ep = np.full((n, wpw, W), -1, np.int16)
        self.ws = ws_info
        if ws_info:
            k = mem.names.index('ws')
            self.ws_k, self.ws_off = k, mem.offs[k]
            nword = mem.sizes[k] // 4
            self.ws_pub = np.full(nword, -2, np.int32)
            self.ws_owner = np.full(nword, -1, np.int32)
            self.ws_stores = []
            self.known = np.zeros((NW, ws_info['nflags']), bool)
        self.pc = 0
        self.stats = {}
        self.hooks = {}

    def err(self, key, msg):
        if key not in self.errors:
            self.errors[key] = msg
            print('ERROR [%d] %s | %s' % (self.pc, self.ins[self.pc].text, msg))

    def execmask(self):
        lo, hi = self.S[126], self.S[127]
        if self.act.all() and (lo == 0xffffffff).all() and (hi == 0xffffffff).all():
            return None
        e = (lo.astype(np.uint64) | (hi.astype(np.uint64) << np.uint64(32)))
        m = ((e[:, None] >> LANE[None, :].astype(np.uint64)) & np.uint64(1)).astype(bool)
        return m & self.act[:, None]

    def fullmask(self):
        m = self.execmask()
        return np.ones((self.NW, 64), bool) if m is None else m

    def vidx(self, r):
        return int(r[1:]) + (256 if r[0] == 'a' else 0)

    def rv(self, i):
        if self.V[i] is None:
            self.err(('uninit', i), 'read of never written register %d' % i)
            self.V[i] = self.junk.copy()
        return self.V[i]

    def wv_(self, i, val, mask='exec'):
        if isinstance(mask, str):
            mask = self.execmask()
        val = np.broadcast_to(val, (self.NW, 64))
        if mask is None:
            self.V[i] = np.array(val, dtype=U32)
        else:
            old = self.V[i] if self.V[i] is not None else self.junk
            self.V[i] = np.where(mask, val, old).astype(U32)

    def sidx(self, tok):
        return SREG[tok] if tok in SREG else int(tok[1:])

    def const(self, tok):
        if re.match(r'^-?\d+\.\d+$', tok):
            return int(f2u(np.array([float(tok)]))[0])
        try:
            return int(tok, 0) & 0xffffffff
        except ValueError:
            e = tok
            for k, val in self.syms.items():
                e = e.replace(k, str(val))
            return int(eval(e.replace('/', '//'))) & 0xffffffff

    def ssrc(self, tok):
        r = regs_of(tok)
        if r:
            return self.S[self.sidx(r[0])]
        return np.full(self.NW, self.const(tok), U32)

    def ssrc64(self, tok):
        r = regs_of(tok)
        if r:
            return self.S[self.sidx(r[0])].astype(np.uint64) | (self.S[self.sidx(r[1])].astype(np.uint64) << np.uint64(32))
        c = int(tok, 0)
        assert -16 <= c <= 0x7fffffff, tok
        return np.full(self.NW, c & 0xffffffffffffffff, np.uint64)

    def sw(self, tok, val):
        i = self.sidx(regs_of(tok)[0])
        self.S[i] = np.where(self.act, np.asarray(val).astype(U32), self.S[i])

    def sw64(self, tok, val):
        r = regs_of(tok)
        self.S[self.sidx(r[0])] = np.where(self.act, (val & np.uint64(0xffffffff)).astype(U32), self.S[self.sidx(r[0])])
        self.S[self.sidx(r[1])] = np.where(self.act, (val >> np.uint64(32)).astype(U32), self.S[self.sidx(r[1])])

    def setscc(self, val):
        self.scc = np.where(self.act, val, self.scc)

    def vsrc(self, tok):
        neg = False
        if tok.startswith('-') and regs_of(tok):
            neg, tok = True, tok[1:]
        r = regs_of(tok)
        if r and r[0][0] in 'va' and not r[0].startswith('vcc'):
            x = self.rv(self.vidx(r[0]))
        elif r:
            x = self.S[self.sidx(r[0])][:, None]
        else:
            x = np.array([[self.const(tok)]], U32)
        return x ^ U32(0x80000000) if neg else x

    def fsrc(self, tok):
        return u2f(self.vsrc(tok))

    def lanemask(self, tok):
        e = self.ssrc64(tok)
        return ((e[:, None] >> LANE[None, :].astype(np.uint64)) & np.uint64(1)).astype(bool)

    def wmask(self, tok, bits):
        m = self.execmask()
        bits = np.broadcast_to(bits, (self.NW, 64))
        if m is not None:
            bits = bits & m
        val = (bits.astype(np.uint64) << LANE[None, :].astype(np.uint64)).sum(axis=1, dtype=np.uint64)
        self.sw64(tok, val)

    def check_pending(self, it):
        touched = set(it.defs) | set(it.uses)
        for fifo in (self.vm, self.lg):
            for e in fifo:
                if e['regs'] & touched and (e['pend'] & self.act).any():
                    self.err(('pend', self.pc), 'touches %s of an operation still in flight: %s' % (sorted(e['regs'] & touched), e['text']))

    def push(self, fifo, it, done=None, ooo=False):
        fifo.append(dict(pend=self.act.copy(), regs=set(it.defs), done=done, text=it.text, ooo=ooo))

    def wait(self, fifo, n):
        cnt = np.zeros(self.NW, int)
        for e in reversed(fifo):
            if e['ooo']:
                fin = e['pend'] & self.act & (n == 0)
            else:
                fin = e['pend'] & self.act & (cnt >= n)
                cnt += e['pend']
            if fin.any():
                e['pend'] = e['pend'] & ~fin
                if e['done']:
                    e['done'](fin)
        fifo[:] = [e for e in fifo if e['pend'].any()]

    def lds_words(self, addr, nw, mask, what):
        bad = mask & ((addr + 4 * nw > self.ldsb) | (addr % 4 != 0))
        if bad.any():
            w, l = np.argwhere(bad)[0]
            self.err(('ldsoob', self.pc), 'LDS address out of range / misaligned: wave %d lane %d %d' % (w, l, addr[w, l]))
            mask = mask & ~bad
        return np.where(mask, addr >> 2, 0).astype(np.int64), mask

    def race_sel(self, word, mask, nw):
        rw = self.rwaves
        g = np.repeat(np.arange(len(self.rw)), self.wpw)
        m = mask[rw]
        wi, li = np.nonzero(m)
        G = np.repeat(g[wi], nw); Wv = np.repeat(self.wv[rw][wi], nw); WI = np.repeat(wi, nw)
        X = (word[rw][wi, li][:, None] + np.arange(nw)[None, :]).reshape(-1)
        return G, Wv, X, WI

    def race_read(self, word, mask, nw):
        G, Wv, X, WI = self.race_sel(word, mask, nw)
        ep, ww = self.w_ep[G, X], self.w_wave[G, X]
        bad = ep < 0
        if bad.any():
            i = np.argmax(bad)
            self.err(('ldsuninit', self.pc), 'LDS read of never written word %d (wave %d)' % (X[i] * 4, Wv[i]))
        bad = (ep == INF) | ((ep >= self.epoch) & ((ww != Wv) | self.w_atomic[G, X]))
        if bad.any():
            i = np.argmax(bad)
            self.err(('ldsraw', self.pc), 'LDS RAW race at byte %d: reader wave %d, writer wave %d epoch %d (now %d)' % (X[i] * 4, Wv[i], ww[i], ep[i], self.epoch))
        self.r_ep[G, Wv, X] = INF

        def done(fin):
            f = fin[self.rwaves][WI]
            self.r_ep[G[f], Wv[f], X[f]] = self.epoch
        return done

    def race_write(self, word, mask, nw, atomic=False, dma=False, dummy=False):
        G, Wv, X, WI = self.race_sel(word, mask, nw)
        if dummy:
            keep = np.zeros(len(X), bool)
        r = self.r_ep[G, :, X]
        other = np.arange(self.wpw)[None, :] != Wv[:, None]
        bad = (r >= self.epoch) & other
        if dma:
            bad |= (r == INF) & ~other
        if bad.any():
            i = np.argwhere(bad)[0]
            self.err(('ldswar', self.pc), 'LDS WAR race at byte %d: writer wave %d, reader wave %d epoch %d (now %d)' % (X[i[0]] * 4, Wv[i[0]], i[1], r[i[0], i[1]], self.epoch))
        ep, ww = self.w_ep[G, X], self.w_wave[G, X]
        both_atomic = atomic & self.w_atomic[G, X]
        bad = (((ep >= self.epoch) & (ww != Wv)) | ((ep == INF) & True)) & ~both_atomic
        if not dummy and bad.any():
            i = np.argmax(bad)
            self.err(('ldswaw', self.pc), 'LDS WAW race at byte %d: wave %d vs wave %d epoch %d (now %d)' % (X[i] * 4, Wv[i], ww[i], ep[i], self.epoch))
        if atomic and (ep < 0).any():
            self.err(('ldsatun', self.pc), 'LDS atomic on never written word')
        if not atomic and not dummy:
            key = G.astype(np.int64) * (self.ldsb // 4) + X
            u, c = np.unique(key, return_counts=True)
            if (c > 1).any():
                kk = u[np.argmax(c > 1)]
                ws_ = np.unique(Wv[key == kk])
                if len(ws_) > 1:
                    self.err(('ldsww', self.pc), 'several waves write LDS byte %d in one instruction' % ((kk % (self.ldsb // 4)) * 4))
        self.w_wave[G, X] = Wv
        self.w_atomic[G, X] = atomic
        if dma:
            self.w_ep[G, X] = INF
        else:
            self.w_ep[G, X] = INF - 1

        def done(fin):
            f = fin[self.rwaves][WI]
            self.w_ep[G[f], X[f]] = self.epoch
        return done

    def ws_load(self, idx, kk, mask, nw, sc1):
        if not self.ws:
            return None
        m = mask & (kk == self.ws_k)
        if not m.any():
            return None
        wi, li = np.nonzero(m)
        word = ((idx[wi, li] - self.ws_off) >> 2)
        info = self.ws
        isflag = (word * 4 >= info['flag0']) & (word * 4 < info['flag1'])
        if isflag.any():
            fl = (word[isflag] * 4 - info['flag0']) // 8
            wf = wi[isflag]
            ok = self.ws_pub[word[isflag]] != -2

            def done(fin):
                f = fin[wf] & ok
                self.known[wf[f], fl[f]] = True
            return done
        if not sc1:
            self.err(('nosc1', self.pc), 'workspace load without sc1')
        selfval = np.zeros(len(word), bool)
        for lo, hi in info['selfval']:
            selfval |= (word * 4 >= lo) & (word * 4 < hi)
        for d in range(nw):
            pub = self.ws_pub[word + d]
            bad = ~selfval & (pub < 0)
            if bad.any():
                i = np.argmax(bad)
                self.err(('wsunpub', self.pc), 'workspace load of unpublished word at %x (state %d), wave %d' % ((word[i] + d) * 4, pub[i], wi[i]))
                break
            bad = ~selfval & ~self.known[wi, np.maximum(pub, 0)]
            if bad.any():
                i = np.argmax(bad)
                self.err(('wsunk', self.pc), 'workspace load at %x: wave %d has not seen flag %d' % ((word[i] + d) * 4, wi[i], pub[i]))
                break
        return None

    def ws_store(self, idx, kk, mask, nw, sc1):
        if not self.ws:
            return None
        m = mask & (kk == self.ws_k)
        if not m.any():
            return None
        wi, li = np.nonzero(m)
        word = ((idx[wi, li] - self.ws_off) >> 2)
        info = self.ws
        if word.min() * 4 >= info['free']:
            return None
        if not sc1:
            self.err(('nosc1', self.pc), 'workspace store without sc1')
        isflag = (word * 4 >= info['flag0']) & (word * 4 < info['flag1'])
        if isflag.any():
            assert isflag.all()
            fl_of_wg = np.full(self.nwg, -1)
            fl_of_wg[self.wg[wi]] = (word * 4 - info['flag0']) // 8
            fwave = np.full(self.nwg, -1)
            fwave[self.wg[wi]] = wi
            for d in range(nw):
                self.ws_pub[word + d] = -1
            rest = []
            for st in self.ws_stores:
                w = st['wi']
                ok = (fl_of_wg[self.wg[w]] >= 0) & ((st['ep'] < self.epoch) | ((st['ep'] < INF) & (w == fwave[self.wg[w]]))) & ~st['pub']
                for d in range(st['nw']):
                    self.ws_pub[st['word'][ok] + d] = fl_of_wg[self.wg[w[ok]]]
                st['pub'] |= ok
                if not st['pub'].all():
                    rest.append(st)
            self.ws_stores = rest
            return None
        for d in range(nw):
            if (self.ws_pub[word + d] != -2).any():
                self.err(('wsdup', self.pc), 'workspace word stored twice at %x' % (word[np.argmax(self.ws_pub[word + d] != -2)] * 4))
            self.ws_pub[word + d] = -1
        st = dict(wi=wi, word=word, nw=nw, ep=np.full(len(wi), INF), pub=np.zeros(len(wi), bool))
        self.ws_stores.append(st)

        def done(fin):
            st['ep'][fin[wi]] = self.epoch
        return done

    def run(self, stop=None):
        n = len(self.ins)
        while self.pc < n:
            it = self.ins[self.pc]
            if it.kind == 'label':
                back = self.wait_label == self.pc
                if back.any():
                    self.act = self.act | back
                    self.wait_label[back] = -1
            elif self.act.any():
                if self.pc in self.hooks:
                    self.hooks[self.pc](self)
                self.check_pending(it)
                with np.errstate(all='ignore'):
                    self.step(it)
            self.pc += 1

    def operands(self, it):
        t = it.text.split(None, 1)
        rest = t[1] if len(t) > 1 else ''
        ops = [o.strip() for o in rest.split(',')] if rest else []
        mods = ''
        if ops:
            last = ops[-1].split(None, 1)
            ops[-1] = last[0]
            mods = last[1] if len(last) > 1 else ''
        return ops, mods

    def step(self, it):
        op = it.op
        ops, mods = self.operands(it)
        k = it.kind
        if k in ('nop', 'sleep', 'setprio'):
            return
        if k == 'waitcnt':
            m = re.search(r'vmcnt\((\d+)\)', it.text)
            if m:
                self.wait(self.vm, int(m.group(1)))
            m = re.search(r'lgkmcnt\((\d+)\)', it.text)
            if m:
                self.wait(self.lg, int(m.group(1)))
            return
        if k == 'barrier':
            a = self.act.reshape(self.nwg, self.wpw)
            if (a.any(axis=1) != a.all(axis=1)).any():
                self.err(('bar', self.pc), 'barrier reached by a part of a workgroup')
            self.epoch += 1
            if self.ws:
                kn = self.known.reshape(self.nwg, self.wpw, -1)
                kn |= kn.any(axis=1, keepdims=True)
            return
        if k == 'endpgm':
            self.act[:] = False
            return
        if k == 'branch':
            tgt = self.labels[ops[0]]
            take = self.act.copy()
            if op == 's_cbranch_scc1':
                take &= self.scc
            elif op == 's_cbranch_scc0':
                take &= ~self.scc
            else:
                assert op == 's_branch'
            if tgt < self.pc:
                if take.any():
                    self.err(('spin', self.pc), 'poll not satisfied in lock step for %d waves (first %d)' % (take.sum(), np.argmax(take)))
                return
            self.act = self.act & ~take
            self.wait_label[take] = tgt
            return
        getattr(self, 'x_' + k)(it, op, ops, mods)

    def x_smem(self, it, op, ops, mods):
        d = regs_of(ops[0])
        if op in ('s_memtime', 's_memrealtime'):
            self.sw64(ops[0], np.full(self.NW, self.pc, np.uint64))
        else:
            addr = self.ssrc64(ops[1]).astype(np.int64) + int(ops[2], 0)
            idx, kk = self.mem.resolve(addr[:, None], 4 * len(d), self.act[:, None], it.text)
            for j, r in enumerate(d):
                self.S[self.sidx(r)] = np.where(self.act, self.mem.d32[(idx[:, 0] >> 2) + j], self.S[self.sidx(r)])
        self.push(self.lg, it, ooo=True)

    def x_salu(self, it, op, ops, mods):
        g = self.ssrc
        u64 = np.uint64
        if op == 's_mov_b32':
            self.sw(ops[0], g(ops[1]))
        elif op == 's_mov_b64':
            self.sw64(ops[0], self.ssrc64(ops[1]))
        elif op == 's_getpc_b64':
            self.sw64(ops[0], np.full(self.NW, self.syms['__code'] + self.syms['L_pc'], u64))
        elif op in ('s_add_u32', 's_addc_u32'):
            r = g(ops[1]).astype(u64) + g(ops[2]).astype(u64) + (self.scc.astype(u64) if op == 's_addc_u32' else u64(0))
            self.sw(ops[0], r & u64(0xffffffff)); self.setscc(r > u64(0xffffffff))
        elif op == 's_sub_u32':
            a, b = g(ops[1]), g(ops[2])
            self.sw(ops[0], a - b); self.setscc(b > a)
        elif op == 's_mul_i32':
            self.sw(ops[0], g(ops[1]) * g(ops[2]))
        elif op in ('s_lshl_b32', 's_lshr_b32', 's_and_b32', 's_or_b32', 's_xor_b32'):
            a, b = g(ops[1]), g(ops[2])
            r = {'s_lshl_b32': lambda: a << (b & 31), 's_lshr_b32': lambda: a >> (b & 31), 's_and_b32': lambda: a & b,
                 's_or_b32': lambda: a | b, 's_xor_b32': lambda: a ^ b}[op]()
            self.sw(ops[0], r); self.setscc(r != 0)
        elif op in ('s_and_b64', 's_or_b64'):
            a, b = self.ssrc64(ops[1]), self.ssrc64(ops[2])
            r = a & b if op == 's_and_b64' else a | b
            self.sw64(ops[0], r); self.setscc(r != 0)
        elif op == 's_cselect_b32':
            self.sw(ops[0], np.where(self.scc, g(ops[1]), g(ops[2])))
        elif op == 's_cselect_b64':
            self.sw64(ops[0], np.where(self.scc, self.ssrc64(ops[1]), self.ssrc64(ops[2])))
        elif op == 's_cmp_eq_u64':
            self.setscc(self.ssrc64(ops[0]) == self.ssrc64(ops[1]))
        elif op.startswith('s_cmp_'):
            a, b = g(ops[0]), g(ops[1])
            assert op.endswith('u32')
            self.setscc({'eq': a == b, 'lg': a != b, 'ge': a >= b, 'gt': a > b, 'lt': a < b, 'le': a <= b}[op[6:8]])
        elif op == 's_bitcmp1_b32':
            self.setscc(((g(ops[0]) >> (g(ops[1]) & 31)) & 1) == 1)
        elif op == 's_bfe_u32':
            a, b = g(ops[1]), g(ops[2])
            r = (a >> (b & 31)) & ((U32(1) << ((b >> 16) & 31)) - U32(1))
            self.sw(ops[0], r); self.setscc(r != 0)
        elif op == 's_min_u32':
            a, b = g(ops[1]), g(ops[2])
            self.sw(ops[0], np.minimum(a, b)); self.setscc(a < b)
        else:
            raise NotImplementedError(it.text)

    def x_trans(self, it, op, ops, mods):
        x = self.fsrc(ops[1]).astype(np.float64)
        r = {'v_exp_f32': lambda: np.exp2(x), 'v_rcp_f32': lambda: 1.0 / x, 'v_sqrt_f32': lambda: np.sqrt(x), 'v_rsq_f32': lambda: 1 / np.sqrt(x),
             'v_sin_f32': lambda: np.sin(2 * np.pi * x), 'v_cos_f32': lambda: np.cos(2 * np.pi * x)}[op]()
        self.wv_(self.vidx(ops[0]), f2u(r.astype(F32)))

    def x_valu(self, it, op, ops, mods):
        g, f = self.vsrc, self.fsrc
        if op.startswith('v_cmp_'):
            a, b = g(ops[1]), g(ops[2])
            assert op.endswith('u32')
            self.wmask(ops[0], {'eq': a == b, 'ne': a != b, 'ge': a >= b, 'gt': a > b, 'lt': a < b, 'le': a <= b}[op[6:8]])
            return
        if op == 'v_readfirstlane_b32':
            m = self.fullmask()
            first = np.argmax(m, axis=1)
            self.sw(ops[0], g(ops[1])[np.arange(self.NW), first])
            return
        if op == 'v_writelane_b32':
            d = self.vidx(ops[0]); x = self.rv(d).copy()
            x[:, int(ops[2])] = np.where(self.act, self.ssrc(ops[1]), x[:, int(ops[2])])
            self.V[d] = x
            return
        if op == 'v_permlane32_swap_b32':
            assert self.execmask() is None
            i, j = self.vidx(ops[0]), self.vidx(ops[1])
            a, b = self.rv(i).copy(), self.rv(j).copy()
            a2, b2 = a.copy(), b.copy()
            a2[:, 32:] = b[:, :32]
            b2[:, :32] = a[:, 32:]
            self.V[i], self.V[j] = a2, b2
            return
        d = self.vidx(regs_of(ops[0])[0])
        fma = lambda a, b, c: (a.astype(np.float64) * b.astype(np.float64) + c.astype(np.float64)).astype(F32)
        if op == 'v_fmac_f32_dpp':
            assert 'row_ror:8' in mods
            src = u2f(np.broadcast_to(g(ops[1]), (self.NW, 64))[:, LANE ^ 8])
            r = f2u(fma(src, f(ops[2]), f(ops[0])))
        elif op in ('v_mov_b32', 'v_accvgpr_read_b32', 'v_accvgpr_write_b32'):
            r = g(ops[1])
        elif op == 'v_add_u32':
            r = g(ops[1]) + g(ops[2])
        elif op == 'v_sub_u32':
            r = g(ops[1]) - g(ops[2])
        elif op == 'v_subrev_u32':
            r = g(ops[2]) - g(ops[1])
        elif op == 'v_and_b32':
            r = g(ops[1]) & g(ops[2])
        elif op == 'v_or_b32':
            r = g(ops[1]) | g(ops[2])
        elif op == 'v_xor_b32':
            r = g(ops[1]) ^ g(ops[2])
        elif op == 'v_lshlrev_b32':
            r = g(ops[2]) << (g(ops[1]) & 31)
        elif op == 'v_lshrrev_b32':
            r = g(ops[2]) >> (g(ops[1]) & 31)
        elif op == 'v_lshl_add_u32':
            r = (g(ops[1]) << (g(ops[2]) & 31)) + g(ops[3])
        elif op == 'v_lshl_or_b32':
            r = (g(ops[1]) << (g(ops[2]) & 31)) | g(ops[3])
        elif op == 'v_and_or_b32':
            r = (g(ops[1]) & g(ops[2])) | g(ops[3])
        elif op == 'v_add3_u32':
            r = g(ops[1]) + g(ops[2]) + g(ops[3])
        elif op == 'v_mad_u32_u24':
            r = (g(ops[1]) & 0xffffff) * (g(ops[2]) & 0xffffff) + g(ops[3])
        elif op == 'v_bfe_u32':
            r = (g(ops[1]) >> (g(ops[2]) & 31)) & ((U32(1) << (g(ops[3]) & 31)) - U32(1))
        elif op == 'v_mul_u32_u24':
            r = (g(ops[1]) & 0xffffff) * (g(ops[2]) & 0xffffff)
        elif op == 'v_min_u32':
            r = np.minimum(g(ops[1]), g(ops[2]))
        elif op == 'v_cndmask_b32':
            r = np.where(self.lanemask(ops[3]), g(ops[2]), g(ops[1]))
        elif op == 'v_mul_f32':
            r = f2u(f(ops[1]) * f(ops[2]))
        elif op == 'v_add_f32':
            r = f2u(f(ops[1]) + f(ops[2]))
        elif op == 'v_sub_f32':
            r = f2u(f(ops[1]) - f(ops[2]))
        elif op == 'v_max_f32':
            r = f2u(np.maximum(f(ops[1]), f(ops[2])))
        elif op == 'v_fma_f32':
            r = f2u(fma(f(ops[1]), f(ops[2]), f(ops[3])))
        elif op == 'v_fmac_f32':
            r = f2u(fma(f(ops[1]), f(ops[2]), f(ops[0])))
        elif op == 'v_rndne_f32':
            r = f2u(np.rint(f(ops[1])))
        elif op == 'v_cvt_pk_bf16_f32':
            r = bf16_round(f(ops[1])) | (bf16_round(f(ops[2])) << 16)
        elif op == 'v_dot2_f32_bf16':
            a, b = g(ops[1]), g(ops[2])
            lo = u2f(a << 16).astype(np.float64) * u2f(np.broadcast_to(b << 16, a.shape)).astype(np.float64)
            hi = u2f(a & 0xffff0000).astype(np.float64) * u2f(np.broadcast_to(b & 0xffff0000, a.shape)).astype(np.float64)
            r = f2u((lo + hi + f(ops[3])).astype(F32))
        elif op == 'v_perm_b32':
            a, b, c = [np.broadcast_to(g(o), (self.NW, 64)) for o in ops[1:4]]
            both = (a.astype(np.uint64) << np.uint64(32)) | b.astype(np.uint64)
            r = np.zeros((self.NW, 64), U32)
            for by in range(4):
                sel = (c >> (8 * by)) & 0xff
                assert (sel < 8).all()
                r |= (((both >> (sel.astype(np.uint64) * np.uint64(8))) & np.uint64(0xff)).astype(U32) << (8 * by))
        else:
            raise NotImplementedError(it.text)
        self.wv_(d, r)

    def unpack(self, tok):
        regs = [self.rv(self.vidx(r)) for r in regs_of(tok)]
        x = np.stack(regs, axis=2)
        lo, hi = u2f(x << 16), u2f(x & 0xffff0000)
        return np.stack([lo, hi], axis=3).reshape(self.NW, 64, 8)

    def x_mfma(self, it, op, ops, mods):
        if self.execmask() is not None:
            self.err(('mfmaexec', self.pc), 'MFMA with a partial EXEC / skipped waves')
        NW = self.NW
        A, B = self.unpack(ops[1]), self.unpack(ops[2])
        D = [self.vidx(r) for r in regs_of(ops[0])]
        if '32x32x16' in op:
            M, G = 32, 2
        else:
            M, G = 16, 4
        A = A.reshape(NW, G, M, 8).transpose(0, 2, 1, 3).reshape(NW, M, G * 8)
        B = B.reshape(NW, G, M, 8).transpose(0, 1, 3, 2).reshape(NW, G * 8, M)
        R = np.matmul(A, B)
        if M == 32:
            R = R.reshape(NW, 4, 2, 4, 32).transpose(1, 3, 0, 2, 4).reshape(16, NW, 64)
        else:
            R = R.reshape(NW, 4, 4, 16).transpose(2, 0, 1, 3).reshape(4, NW, 64)
        C = regs_of(ops[3])
        for i, d in enumerate(D):
            r = R[i]
            if C:
                r = r + u2f(self.rv(self.vidx(C[i])))
            else:
                assert ops[3] == '0'
            self.V[d] = f2u(r)

    def x_ds(self, it, op, ops, mods):
        m = self.fullmask()
        off = re.search(r'offset:(\d+)', mods)
        off = int(off.group(1)) if off else 0
        wg = self.wg[:, None]
        dones = []
        if op.startswith('ds_read'):
            base = self.vsrc(ops[1]).astype(np.int64)
            D = [self.vidx(r) for r in regs_of(ops[0])]
            if op == 'ds_read2_b32':
                o = [int(re.search(r'offset%d:(\d+)' % j, mods).group(1)) * 4 for j in range(2)]
                for j in range(2):
                    w, mm = self.lds_words(base + o[j], 1, m, it.text)
                    dones.append(self.race_read(w, mm, 1))
                    self.wv_(D[j], self.lds[wg, w], m)
            elif op == 'ds_read_u16':
                a = base + off
                w, mm = self.lds_words(a & ~3, 1, m, it.text)
                dones.append(self.race_read(w, mm, 1))
                self.wv_(D[0], (self.lds[wg, w] >> ((a & 2) * 8).astype(U32)) & 0xffff, m)
            elif op == 'ds_read_b64_tr_b16':
                if self.execmask() is not None and not (m.all(axis=1) | ~m.any(axis=1)).all():
                    self.err(('trexec', self.pc), 'transposing read with partial EXEC')
                if ((base + off) % 8).any():
                    self.err(('tral', self.pc), 'misaligned b64')
                w, mm = self.lds_words(base + off, 2, m, it.text)
                dones.append(self.race_read(w, mm, 2))
                x = np.stack([self.lds[wg, w], self.lds[wg, w + 1]], axis=2)
                h = np.stack([x & 0xffff, x >> 16], axis=3).reshape(self.NW, 4, 4, 16)
                h = h.transpose(0, 1, 3, 2).reshape(self.NW, 64, 4)
                self.wv_(D[0], h[:, :, 0] | (h[:, :, 1] << 16), m)
                self.wv_(D[1], h[:, :, 2] | (h[:, :, 3] << 16), m)
            else:
                nw = len(D)
                if (((base + off) % (4 * nw)) * m).any():
                    self.err(('dsal', self.pc), 'misaligned LDS read')
                w, mm = self.lds_words(base + off, nw, m, it.text)
                dones.append(self.race_read(w, mm, nw))
                for j in range(nw):
                    self.wv_(D[j], self.lds[wg, w + j], m)
        else:
            base = self.vsrc(ops[0]).astype(np.int64) + off
            Sx = [self.rv(self.vidx(r)) for r in regs_of(ops[1])]
            w, mm = self.lds_words(base, len(Sx), m, it.text)
            wi, li = np.nonzero(mm)
            if op == 'ds_add_f32':
                dones.append(self.race_write(w, mm, 1, atomic=True))
                np.add.at(self.lds.view(F32), (self.wg[wi], w[wi, li]), u2f(Sx[0])[wi, li])
            else:
                assert op.startswith('ds_write_b')
                dones.append(self.race_write(w, mm, len(Sx)))
                for j, x in enumerate(Sx):
                    self.lds[self.wg[wi], w[wi, li] + j] = x[wi, li]
        self.push(self.lg, it, lambda fin: [d(fin) for d in dones])

    def gaddr(self, it, op, ops, mods, first, nbytes, m):
        off = re.search(r'offset:(\d+)', mods)
        off = int(off.group(1)) if off else 0
        if op.startswith('global'):
            addr = self.ssrc64(ops[first + 1]).astype(np.int64)[:, None] + self.vsrc(ops[first]).astype(np.int64) + off
            idx, kk = self.mem.resolve(addr, nbytes, m, it.text)
            return idx, kk, m, off
        srd = [self.S[self.sidx(r)] for r in regs_of(ops[first + 1])]
        if (srd[3][self.act] != 0x20000).any() or ((srd[1][self.act] >> 16) != 0).any():
            self.err(('srd', self.pc), 'bad descriptor')
        vo = (self.vsrc(ops[first]).astype(np.int64) if ' offen' in ' ' + mods else np.zeros((1, 64), np.int64)) + off
        so = self.ssrc(ops[first + 2]).astype(np.int64)[:, None]
        nr = srd[2].astype(np.int64)[:, None]
        inr = m & (vo + so + nbytes <= nr)
        sus = m & ~inr & (vo + nbytes <= nr)
        if sus.any():
            self.err(('soff', self.pc), 'range check depends on the scalar offset')
        addr = (srd[0].astype(np.int64) | (srd[1].astype(np.int64) << 32))[:, None] + vo + so
        idx, kk = self.mem.resolve(addr, nbytes, inr, it.text)
        return idx, kk, inr, off

    def x_dma(self, it, op, ops, mods):
        m = self.fullmask()
        idx, kk, inr, off = self.gaddr(it, op, ops, mods, 0, 16, m)
        a = (self.S[124] & 0x3fffc).astype(np.int64)[:, None] + off + LANE[None, :].astype(np.int64) * 16
        w, mm = self.lds_words(a, 4, m, it.text)
        dummy = op.startswith('global')
        done = self.race_write(w, mm, 4, dma=True, dummy=dummy)
        wi, li = np.nonzero(mm)
        for j in range(4):
            val = np.where(inr, self.mem.d32[(idx >> 2) + j], 0).astype(U32)
            self.lds[self.wg[wi], w[wi, li] + j] = val[wi, li]
        d2 = self.ws_load(idx, kk, inr, 4, ' sc1' in ' ' + mods)
        self.push(self.vm, it, done)

    def x_vmem(self, it, op, ops, mods):
        m = self.fullmask()
        sc1 = ' sc1' in ' ' + mods
        if '_load_' in op:
            D = [self.vidx(r) for r in regs_of(ops[0])]
            nb = 2 if 'ushort' in op else 4 * len(D)
            idx, kk, inr, off = self.gaddr(it, op, ops, mods, 1, nb, m)
            if nb == 2:
                self.wv_(D[0], np.where(inr, self.mem.d16[idx >> 1], 0).astype(U32), m)
            else:
                for j, d in enumerate(D):
                    self.wv_(d, np.where(inr, self.mem.d32[(idx >> 2) + j], 0).astype(U32), m)
            done = self.ws_load(idx, kk, inr, len(D), sc1)
        else:
            assert op.startswith('buffer_store')
            Sx = [self.rv(self.vidx(r)) for r in regs_of(ops[0])]
            idx, kk, inr, off = self.gaddr(it, op, ops, mods, 1, 4 * len(Sx), m)
            names = {self.mem.names[x] for x in np.unique(kk[inr])}
            if not names <= {'ws', 'out', 'dbg'}:
                self.err(('stin', self.pc), 'store into ' + str(names))
            done = self.ws_store(idx, kk, inr, len(Sx), sc1)
            for j, x in enumerate(Sx):
                self.mem.d32[(idx[inr] >> 2) + j] = x[inr]
        self.push(self.vm, it, done)
```

```python
import sys, argparse
from contextlib import contextmanager
from asmir import Prog, Inst, Mark, Group, merge, finish, flat, weight

NAME = 'parallel_sum__ssm_conv_s5__dense_activation_silu__prompt'

SLOT = 8192
SM = 19 * SLOT
SM_STAT, SM_CS, SM_TS, SM_E, SM_PART = SM, SM + 1024, SM + 2048, SM + 4096, SM + 6144
SM_DUMMY = SM_PART
LDS_BYTES = 163840
WS_FLAGS, WS_STATS, WS_E, WS_H = 0x1000, 0x8000, 0x10000, 0x80000
H_R2 = 176 * 2048
WS_END = WS_H + 32 * H_R2
WS_STAMP = 0xC00000
OOB = 0x40000000

XSLOT = [10, 13, 16, 0]
ASLOT = [12, 15, 18, 2]
SSLOT = [3, 4, 5, 6, 7, 8, 9, 10]
BSLOT = [11, 12, 13, 14, 15, 16, 17, 18]
TR_BASE = 16 * SLOT
XR_BASE = 18 * SLOT
RED_BASE = 12 * SLOT

T = list(range(0, 24))
vX0, vX1, vW1, vB, vW2 = 24, 25, 26, 27, 28
vA = [29, 30, 31, 32]
vT1 = [33, 34]
vTC, vBC, vHst, vHs = 35, 36, 37, 38
vLr, vLi, vGa, vGb, vL16r, vL16i, vPr, vPi, vL128r, vL128i = range(39, 49)
vNm, vSv, vZc, vCS, vLane, vP, vEo = 49, 50, 51, 52, 53, 54, 55
ACCA, ACCS, XF = 56, 72, 88
NARCH = 216
vPoll, vPollB = vX0, vX1
vAld = vW1
vT2 = vT1
aRING, aCS, aONE = 0, 32, 36

sX, sLre, sLim, sBre, sBim, sCre, sCim, sLdt = 4, 6, 8, 10, 12, 14, 16, 18
sDsk, sOut, sW1, sW2, sWs = 20, 22, 24, 26, 28
SX, SWA, SWB, SB, SW2, SCR, SCI, SWS, SOUT = 32, 36, 40, 44, 48, 52, 56, 60, 64
sK = list(range(68, 76))
sKW = list(range(76, 84))
sW, sRg, sTh, sR, sQ, sJ, sC, sR2, sC2 = range(84, 93)
sW1k, sW2k, sTagA, sTagB = 93, 94, 96, 97
sHa, sHb, sFlag = 95, 98, 99
sT0, sT1, sT2, sT3 = 30, 31, 3, 2
sM0, sM1 = 100, 101
sInv0, sInv1 = 4, 6
sCnt, sAl, sDm = 8, 9, 10
STAMP_T = 28
STAMP_REGS = list(range(11, 20)) + list(range(22, 28)) + list(range(68, 84))


def v(i, n=1):
    return 'v%d' % i if n == 1 else 'v[%d:%d]' % (i, i + n - 1)


def a(i, n=1):
    return 'a%d' % i if n == 1 else 'a[%d:%d]' % (i, i + n - 1)


def s(i, n=1):
    return 's%d' % i if n == 1 else 's[%d:%d]' % (i, i + n - 1)


class Win:
    def __init__(self, regs):
        self.regs = regs
        self.base = 0

    def at(self, p, addr, span):
        if addr < self.base or addr + span - self.base > 65536:
            nb = addr if addr < self.base else max(0, addr + span - 65536 + 0)
            nb = addr - (addr % 1024) if addr >= self.base else addr
            d = nb - self.base
            for r in self.regs:
                p('v_add_u32 %s, %s, %s' % (v(r), hex(d & 0xffffffff), v(r)))
            self.base = nb
        return addr - self.base


class Gen:
    def __init__(self, opt):
        self.o = opt
        self.nlab = 0
        self.nstamp = 0

    def lab(self, name):
        self.nlab += 1
        return 'L%s_%d' % (name, self.nlab)

    @contextmanager
    def skip(self, p, name, *cond):
        l = self.lab(name)
        with p.atomic():
            for c in cond:
                p(c)
            p('s_cbranch_scc1 ' + l)
            with p.atomic(optional=True):
                yield l
            p(l + ':')

    def stamp(self, p, name):
        if not self.o.stamps or (self.o.only and name not in self.o.only.split(',')):
            return
        k = len(self.stamp_names)
        with p.atomic():
            if k:
                p('s_mov_b32 %s, %s' % (s(STAMP_REGS[k - 1]), s(STAMP_T)))
            if name:
                p('s_memtime %s' % s(STAMP_T, 2))
        self.stamp_names.append(name)

    def stamp_out(self, p):
        if not self.o.stamps:
            return
        self.o.only = ''
        self.stamp(p, 'end')
        self.stamp(p, '')
        self.stamp_names.pop()
        p('s_memrealtime %s' % s(STAMP_T, 2))
        p('v_mov_b32 v0, 0')
        for k in range(len(self.stamp_names)):
            p('v_writelane_b32 v0, %s, %d' % (s(STAMP_REGS[k]), k))
        p('v_writelane_b32 v0, %s, 60' % s(STAMP_T))
        p('v_writelane_b32 v0, s2, 61')
        p('s_lshl_b32 %s, %s, 3' % (s(sT0), s(sR2)))
        p('s_add_u32 %s, %s, %s' % (s(sT0), s(sT0), s(sC2)))
        p('s_lshl_b32 %s, %s, 3' % (s(sT0), s(sT0)))
        p('s_add_u32 %s, %s, %s' % (s(sT0), s(sT0), s(sW)))
        p('s_lshl_b32 %s, %s, 8' % (s(sT0), s(sT0)))
        p('s_add_u32 %s, %s, %d' % (s(sT0), s(sT0), WS_STAMP))
        p('v_lshlrev_b32 v1, 2, %s' % v(vLane))
        p('buffer_store_dword v0, v1, %s, %s offen' % (s(SWS, 4), s(sT0)))
        if self.o.stamps == 2:
            p('s_load_dwordx2 %s, s[0:1], 104' % s(SOUT, 2))
            p('s_mov_b32 %s, 64' % s(SOUT + 2))
            p('v_subrev_u32 v2, %s, v0' % s(STAMP_REGS[0]))
            p('s_sub_u32 %s, %s, s2' % (s(sT1), s(STAMP_T)))
            p('v_writelane_b32 v2, %s, 0' % s(sT1))
            with self.skip(p, 'dbg', 's_cmp_lg_u32 %s, %d' % (s(sT0), WS_STAMP + 256 * 8 * 100)):
                p('buffer_store_dword v2, v1, %s, 0 offen' % s(SOUT, 4))

    def dma(self, p, voff, srd, soff, lds, wreg, tag, imm=0, pre=None):
        with p.atomic():
            p('s_add_u32 m0, %s, %d' % (s(wreg), lds - imm))
            if pre:
                p(pre)
            p('buffer_load_dwordx4 %s, %s, %s offen%s lds' % (v(voff), s(srd, 4), soff, (' offset:%d' % imm) if imm else ''), tag=tag)

    def dma_chunk(self, i):
        pp = i % 4
        out = []
        for pc in range(2):
            p = Prog()
            self.dma(p, [vX0, vX1][pc], SX, s(sK[i]), XSLOT[pp] * SLOT + pc * 1024, sW2k, 'c%d' % i)
            out.append(p)
        p = Prog()
        self.dma(p, vW1, SWA, s(sKW[i]), ASLOT[pp] * SLOT, sW1k, 'c%d' % i)
        out.append(p)
        return out

    def dma_s(self, i):
        p = Prog()
        self.dma(p, vB, SB, s(sK[i]), SSLOT[i] * SLOT, sW1k, 's%d' % (i // 4))
        return p

    def dma_b(self, i):
        p = Prog()
        self.dma(p, vW1, SWB, s(sKW[i]), BSLOT[i] * SLOT, sW1k, 'b%d' % (i // 4))
        return p

    def dma_B2(self, n):
        g, kg = n // 4, n % 4
        lds = (4 * (g % 4) + kg) * SLOT
        p = Prog()
        if g < 7:
            u = 7 * kg + (2 * g if g < 4 else 2 * (g - 4) + 1)
            self.dma(p, vW2, SW2, s(sDm), lds, sW1k, 'B%d' % g, pre='s_mov_b32 %s, %d' % (s(sDm), u * 65536))
        else:
            pr, part = (g - 7) // 2, (g - 7) % 2
            self.dma(p, vB, [SCR, SCI][part], '0', lds, sW1k, 'B%d' % g, imm=256 * kg + 128 * pr)
        return p

    def bf16r(self, p, dst, src):
        p('v_cvt_pk_bf16_f32 %s, %s, %s' % (v(dst), v(src), v(src)))
        p('v_lshlrev_b32 %s, 16, %s' % (v(dst), v(dst)))

    def cmul_self(self, p, dst, src, cr, ci, add=None):
        if add is None:
            p('v_mul_f32 %s, %s, %s' % (v(dst), v(cr), v(src)))
        else:
            p('v_fma_f32 %s, %s, %s, %s' % (v(dst), v(cr), v(src), v(add)))
        p('v_fmac_f32_dpp %s, %s, %s row_ror:8 row_mask:0xf bank_mask:0xf' % (v(dst), v(src), v(ci)))

    def csq(self, p, dr, di, sr, si, t):
        p('v_mul_f32 %s, %s, %s' % (v(t), v(si), v(si)))
        p('v_mul_f32 %s, %s, %s' % (v(di), v(sr), v(si)))
        p('v_fma_f32 %s, %s, %s, -%s' % (v(dr), v(sr), v(sr), v(t)))
        p('v_add_f32 %s, %s, %s' % (v(di), v(di), v(di)))

    def prologue(self, p):
        o = self.o
        p('s_cmp_ge_u32 s2, 256')
        p('s_cbranch_scc1 L_exit')
        p('s_load_dwordx16 s[4:19], s[0:1], 0')
        p('s_load_dwordx4 s[24:27], s[0:1], 80')
        p('s_load_dwordx2 s[28:29], s[0:1], 112')
        p('s_load_dwordx2 s[20:21], s[0:1], 64')
        p('s_load_dwordx2 s[22:23], s[0:1], 96')
        p('v_lshrrev_b32 v1, 6, v0')
        p('v_and_b32 %s, 63, v0' % v(vLane))
        p('v_readfirstlane_b32 %s, v1' % s(sW))
        p('v_lshlrev_b32 v2, 4, %s' % v(vLane))
        p('s_lshr_b32 %s, s2, 3' % s(sT1))
        if o.stamps:
            p('s_memrealtime s[100:101]')
            p('s_memtime s[98:99]')
        if o.codepf:
            p('s_getpc_b64 s[66:67]')
            p('L_pc:')
            p('s_lshl_b32 %s, %s, 8' % (s(sT0), s(sW)))
            p('s_or_b32 %s, %s, %s' % (s(sT0), s(sT0), s(sT1)))
            with self.skip(p, 'nopf', 's_cmp_ge_u32 %s, (L_end-L_pc)/1024' % s(sT0)):
                p('s_lshl_b32 %s, %s, 10' % (s(sT0), s(sT1)))
                p('v_add_u32 v3, %s, v2' % s(sT0))
                p('s_mov_b32 m0, %d' % SM_DUMMY)
                p('global_load_lds_dwordx4 v3, s[66:67]')
        p('s_and_b32 %s, s2, 7' % s(sT0))
        p('s_and_b32 %s, %s, 1' % (s(sR), s(sT0)))
        p('s_lshl_b32 %s, %s, 3' % (s(sR), s(sR)))
        p('s_lshr_b32 %s, %s, 2' % (s(sT2), s(sT1)))
        p('s_add_u32 %s, %s, %s' % (s(sR), s(sR), s(sT2)))
        p('s_lshr_b32 %s, %s, 1' % (s(sQ), s(sT0)))
        p('s_and_b32 %s, %s, 3' % (s(sJ), s(sT1)))
        p('s_lshl_b32 %s, %s, 2' % (s(sC), s(sQ)))
        p('s_add_u32 %s, %s, %s' % (s(sC), s(sC), s(sJ)))
        p('s_lshl_b32 %s, %s, 2' % (s(sR2), s(sT0)))
        p('s_lshr_b32 %s, %s, 3' % (s(sT2), s(sT1)))
        p('s_add_u32 %s, %s, %s' % (s(sR2), s(sR2), s(sT2)))
        p('s_and_b32 %s, %s, 7' % (s(sC2), s(sT1)))
        p('s_and_b32 %s, %s, 3' % (s(sRg), s(sW)))
        p('s_lshr_b32 %s, %s, 2' % (s(sTh), s(sW)))
        p('s_lshl_b32 %s, %s, 10' % (s(sW1k), s(sW)))
        p('s_lshl_b32 %s, %s, 11' % (s(sW2k), s(sW)))
        p('s_lshl_b32 %s, %s, 1' % (s(sT2), s(sJ)))
        p('s_add_u32 %s, %s, %s' % (s(sT2), s(sT2), s(sR)))
        if not o.rot:
            p('s_mov_b32 %s, 0' % s(sT2))
        for i in range(8):
            p('s_add_u32 %s, %s, %d' % (s(sK[i]), s(sT2), i))
            p('s_and_b32 %s, %s, 7' % (s(sK[i]), s(sK[i])))
            p('s_lshl_b32 %s, %s, 7' % (s(sK[i]), s(sK[i])))
            p('s_mul_i32 %s, %s, 1792' % (s(sKW[i]), s(sK[i])))
        p('v_lshrrev_b32 v3, 3, %s' % v(vLane))
        p('v_and_b32 v4, 7, %s' % v(vLane))
        p('v_lshrrev_b32 v5, 1, v3')
        p('v_xor_b32 v6, v4, v5')
        p('v_lshlrev_b32 v6, 4, v6')
        p('v_lshrrev_b32 v7, 2, v3')
        p('v_lshlrev_b32 v7, 4, v7')
        p('v_and_b32 v8, 3, v3')
        p('v_add_u32 v7, v7, v8')
        p('v_lshl_add_u32 %s, v7, 10, v6' % v(vX0))
        p('s_lshl_b32 %s, %s, 7' % (s(sT0), s(sR)))
        p('s_lshr_b32 %s, %s, 1' % (s(sT1), s(sW)))
        p('s_lshl_b32 %s, %s, 5' % (s(sT1), s(sT1)))
        p('s_add_u32 %s, %s, %s' % (s(sT0), s(sT0), s(sT1)))
        p('s_and_b32 %s, %s, 1' % (s(sT1), s(sW)))
        p('s_lshl_b32 %s, %s, 3' % (s(sT2), s(sT1)))
        p('s_add_u32 %s, %s, %s' % (s(sT0), s(sT0), s(sT2)))
        p('s_lshl_b32 %s, %s, 10' % (s(sT0), s(sT0)))
        p('v_add_u32 %s, %s, %s' % (v(vX0), s(sT0), v(vX0)))
        p('v_xor_b32 %s, 64, %s' % (v(vX1), v(vX0)))
        p('v_add_u32 %s, 0x1000, %s' % (v(vX1), v(vX1)))
        p('s_lshl_b32 %s, %s, 6' % (s(sT1), s(sT1)))
        p('v_lshl_add_u32 %s, v3, 10, v6' % v(vB))
        p('v_xor_b32 %s, %s, %s' % (v(vB), s(sT1), v(vB)))
        p('v_and_b32 v5, 1, v5')
        p('v_lshlrev_b32 v5, 2, v5')
        p('v_xor_b32 v5, v4, v5')
        p('v_lshlrev_b32 v5, 4, v5')
        p('v_lshl_add_u32 %s, v3, 10, v5' % v(vW2))
        p('s_lshl_b32 %s, %s, 3' % (s(sT0), s(sW)))
        p('v_add_u32 v6, %s, v3' % s(sT0))
        p('v_mul_u32_u24 v6, 3584, v6')
        p('v_add_u32 %s, v6, v5' % v(vW1))
        p('s_mul_i32 %s, %s, 7' % (s(sT0), s(sQ)))
        p('s_lshl_b32 %s, %s, 1' % (s(sT1), s(sJ)))
        p('s_add_u32 %s, %s, %s' % (s(sT0), s(sT0), s(sT1)))
        p('s_lshl_b32 %s, %s, 7' % (s(sT0), s(sT0)))
        p('s_mov_b32 %s, 2097152' % s(SX + 2))
        p('s_mov_b32 %s, 0x20000' % s(SX + 3))
        p('s_sub_u32 %s, 1835008, %s' % (s(SWA + 2), s(sT0)))
        p('s_mov_b32 %s, 0x20000' % s(SWA + 3))
        p('s_mov_b32 %s, %s' % (s(SX), s(sX)))
        p('s_mov_b32 %s, %s' % (s(SX + 1), s(sX + 1)))
        p('s_add_u32 %s, %s, %s' % (s(SWA), s(sW1), s(sT0)))
        p('s_addc_u32 %s, %s, 0' % (s(SWA + 1), s(sW1 + 1)))
        p('s_load_dwordx2 %s, %s, 0' % (s(sTagA, 2), s(sWs, 2)))
        for q in self.dma_chunk(0):
            p.extend(q)
        p('s_barrier')
        p('v_and_b32 v9, 31, %s' % v(vLane))
        p('v_lshrrev_b32 v10, 4, v9')
        p('v_lshlrev_b32 v10, 3, v10')
        p('v_add_u32 v10, v10, v4')
        p('s_lshl_b32 %s, %s, 5' % (s(sT1), s(sC)))
        p('s_lshl_b32 %s, %s, 4' % (s(sT2), s(sTh)))
        p('s_add_u32 %s, %s, %s' % (s(sT1), s(sT1), s(sT2)))
        p('v_add_u32 v11, %s, v10' % s(sT1))
        p('v_lshlrev_b32 v11, 1, v11')
        p('global_load_ushort %s, v11, %s' % (v(vGa), s(sLre, 2)))
        p('global_load_ushort %s, v11, %s' % (v(vGb), s(sLim, 2)))
        p('global_load_ushort %s, v11, %s' % (v(vLr), s(sLdt, 2)))
        for q in self.dma_chunk(1):
            p.extend(q)
        p('s_barrier')
        for q in self.dma_chunk(2):
            p.extend(q)
        p('s_add_u32 %s, %s, 128' % (s(SWB), s(SWA)))
        p('s_addc_u32 %s, %s, 0' % (s(SWB + 1), s(SWA + 1)))
        p('s_sub_u32 %s, %s, 128' % (s(SWB + 2), s(SWA + 2)))
        p('s_cmp_eq_u32 %s, 3' % s(sJ))
        p('s_cselect_b32 %s, 0, %s' % (s(SWB + 2), s(SWB + 2)))
        p('s_mov_b32 %s, 0x20000' % s(SWB + 3))
        p('s_lshr_b32 %s, %s, 1' % (s(sT0), s(sRg)))
        p('s_lshl_b32 %s, %s, 3' % (s(sT0), s(sT0)))
        p('s_add_u32 %s, %s, %s' % (s(sT0), s(sT0), s(sT1)))
        p('s_lshl_b32 %s, %s, 10' % (s(sT0), s(sT0)))
        p('s_bitcmp1_b32 %s, 0' % s(sW))
        p('s_cselect_b32 %s, %s, %s' % (s(SB), s(sBim), s(sBre)))
        p('s_cselect_b32 %s, %s, %s' % (s(SB + 1), s(sBim + 1), s(sBre + 1)))
        p('s_add_u32 %s, %s, %s' % (s(SB), s(SB), s(sT0)))
        p('s_addc_u32 %s, %s, 0' % (s(SB + 1), s(SB + 1)))
        p('s_sub_u32 %s, 524288, %s' % (s(SB + 2), s(sT0)))
        p('s_mov_b32 %s, 0x20000' % s(SB + 3))
        p('s_lshl_b32 %s, %s, 13' % (s(sT0), s(sW)))
        p('s_lshl_b32 %s, %s, 7' % (s(sT1), s(sC2)))
        p('s_add_u32 %s, %s, %s' % (s(sT1), s(sT1), s(sT0)))
        p('s_add_u32 %s, %s, %s' % (s(SW2), s(sW2), s(sT1)))
        p('s_addc_u32 %s, %s, 0' % (s(SW2 + 1), s(sW2 + 1)))
        p('s_sub_u32 %s, 1835008, %s' % (s(SW2 + 2), s(sT1)))
        p('s_mov_b32 %s, 0x20000' % s(SW2 + 3))
        p('s_lshl_b32 %s, %s, 16' % (s(sT1), s(sC2)))
        p('s_add_u32 %s, %s, %s' % (s(sT1), s(sT1), s(sT0)))
        for srd, ptr in ((SCR, sCre), (SCI, sCim)):
            p('s_add_u32 %s, %s, %s' % (s(srd), s(ptr), s(sT1)))
            p('s_addc_u32 %s, %s, 0' % (s(srd + 1), s(ptr + 1)))
            p('s_sub_u32 %s, 524288, %s' % (s(srd + 2), s(sT1)))
            p('s_mov_b32 %s, 0x20000' % s(srd + 3))
        p('s_mov_b32 %s, %s' % (s(SWS), s(sWs)))
        p('s_mov_b32 %s, %s' % (s(SWS + 1), s(sWs + 1)))
        p('s_mov_b32 %s, %d' % (s(SWS + 2), WS_STAMP + 0x80000 if o.stamps else WS_END))
        p('s_mov_b32 %s, 0x20000' % s(SWS + 3))
        p('s_mov_b32 %s, %s' % (s(SOUT), s(sOut)))
        p('s_mov_b32 %s, %s' % (s(SOUT + 1), s(sOut + 1)))
        p('s_mov_b32 %s, 4194304' % s(SOUT + 2))
        p('s_mov_b32 %s, 0x20000' % s(SOUT + 3))
        if o.warm:
            p('s_lshl_b32 %s, s2, 3' % s(sT0))
            p('s_add_u32 %s, %s, %s' % (s(sT0), s(sT0), s(sW)))
            p('s_mov_b32 m0, %d' % SM_DUMMY)
            with self.skip(p, 'w1', 's_cmp_ge_u32 %s, 1792' % s(sT0)):
                p('s_lshl_b32 %s, %s, 10' % (s(sT0), s(sT0)))
                p('v_add_u32 v12, %s, v2' % s(sT0))
                p('global_load_lds_dwordx4 v12, %s' % s(sW2, 2))
            with self.skip(p, 'w2', 's_cmp_ge_u32 %s, 4' % s(sW)):
                p('s_and_b32 %s, s2, 127' % s(sT0))
                p('s_lshl_b32 %s, %s, 2' % (s(sT0), s(sT0)))
                p('s_add_u32 %s, %s, %s' % (s(sT0), s(sT0), s(sW)))
                p('s_lshl_b32 %s, %s, 10' % (s(sT0), s(sT0)))
                p('v_add_u32 v12, %s, v2' % s(sT0))
                p('s_cmp_ge_u32 s2, 128')
                p('s_cselect_b32 %s, %s, %s' % (s(sT0), s(sCim), s(sCre)))
                p('s_cselect_b32 %s, %s, %s' % (s(sT1), s(sCim + 1), s(sCre + 1)))
                p('global_load_lds_dwordx4 v12, %s' % s(sT0, 2))
        p('v_lshlrev_b32 v12, 2, v0')
        p('v_add_u32 v12, %d, v12' % SM_STAT)
        p('v_mov_b32 v13, 0')
        p('ds_write_b32 v12, v13')
        p('v_lshrrev_b32 v13, 5, %s' % v(vLane))
        p('v_lshrrev_b32 v14, 1, v9')
        p('v_and_b32 v14, 7, v14')
        p('v_xor_b32 v14, v13, v14')
        p('v_lshlrev_b32 v14, 4, v14')
        p('v_lshl_add_u32 v14, v9, 7, v14')
        p('s_lshl_b32 %s, %s, 6' % (s(sT0), s(sTh)))
        p('v_xor_b32 v14, %s, v14' % s(sT0))
        p('s_lshl_b32 %s, %s, 12' % (s(sT0), s(sRg)))
        p('v_add_u32 %s, %s, v14' % (v(vA[0]), s(sT0)))
        for k in range(1, 4):
            p('v_xor_b32 %s, %d, %s' % (v(vA[k]), 32 * k, v(vA[0])))
        p('v_bfe_u32 v15, %s, 2, 2' % v(vLane))
        p('v_and_b32 v16, 3, %s' % v(vLane))
        p('v_lshrrev_b32 v17, 4, %s' % v(vLane))
        p('v_lshrrev_b32 v18, 1, v15')
        p('v_lshlrev_b32 v18, 2, v18')
        p('v_and_b32 v19, 1, v16')
        p('v_lshlrev_b32 v19, 3, v19')
        p('v_lshrrev_b32 v16, 1, v16')
        p('v_and_b32 v20, 1, v17')
        p('v_lshl_add_u32 v20, v20, 1, v16')
        p('s_lshl_b32 %s, %s, 2' % (s(sT0), s(sTh)))
        p('v_add_u32 v20, %s, v20' % s(sT0))
        p('v_xor_b32 v20, v20, v18')
        p('v_lshl_add_u32 v20, v20, 4, v19')
        p('v_lshl_add_u32 v21, v13, 3, v15')
        p('v_lshl_add_u32 v20, v21, 7, v20')
        p('s_lshl_b32 %s, %s, 12' % (s(sT0), s(sTh)))
        p('v_add_u32 %s, %s, v20' % (v(vT1[0]), s(sT0)))
        p('s_sub_u32 %s, 4096, %s' % (s(sT1), s(sT0)))
        p('v_add_u32 %s, %s, v20' % (v(vT1[1]), s(sT1)))
        p('s_lshl_b32 %s, %s, 1' % (s(sT1), s(sRg)))
        p('v_add_u32 v20, %s, v16' % s(sT1))
        p('v_xor_b32 v20, v20, v18')
        p('v_lshl_add_u32 v20, v20, 4, v19')
        p('v_lshl_add_u32 v21, v17, 3, v15')
        p('v_lshl_add_u32 v20, v21, 7, v20')
        p('v_add_u32 %s, %s, v20' % (v(vTC), s(sT0)))
        p('v_and_b32 v20, 15, %s' % v(vLane))
        p('v_lshrrev_b32 v21, 1, v20')
        p('s_lshl_b32 %s, %s, 2' % (s(sT1), s(sTh)))
        p('v_add_u32 v22, %s, v17' % s(sT1))
        p('v_xor_b32 v21, v21, v22')
        p('v_lshlrev_b32 v21, 4, v21')
        p('v_lshl_add_u32 v21, v20, 7, v21')
        p('s_lshl_b32 %s, %s, 11' % (s(sT1), s(sRg)))
        p('v_add_u32 %s, %s, v21' % (v(vBC), s(sT1)))
        p('s_lshl_b32 %s, %s, 1' % (s(sT0), s(sR)))
        p('s_lshr_b32 %s, %s, 1' % (s(sT1), s(sRg)))
        p('s_add_u32 %s, %s, %s' % (s(sT0), s(sT0), s(sT1)))
        p('s_mul_i32 %s, %s, %d' % (s(sT0), s(sT0), H_R2))
        p('s_and_b32 %s, %s, 1' % (s(sT1), s(sRg)))
        p('s_lshl_b32 %s, %s, 10' % (s(sT1), s(sT1)))
        p('s_add_u32 %s, %s, %s' % (s(sT0), s(sT0), s(sT1)))
        p('s_add_u32 %s, %s, %d' % (s(sT0), s(sT0), WS_H))
        p('v_add_u32 %s, %s, v2' % (v(vHs), s(sT0)))
        p('v_bfe_u32 v20, v9, 2, 1')
        p('v_lshlrev_b32 v20, 4, v20')
        p('v_lshrrev_b32 v21, 3, v9')
        p('v_lshl_add_u32 v20, v21, 2, v20')
        p('v_and_b32 v21, 3, v9')
        p('v_add_u32 %s, v20, v21' % v(vEo))
        p('v_lshl_add_u32 v20, v13, 5, %s' % v(vEo))
        p('v_lshlrev_b32 v20, 4, v20')
        p('v_add_u32 %s, %s, v20' % (v(vHst), s(sT0)))
        if o.stamps:
            p('s_mov_b32 %s, s98' % s(STAMP_T))
            p('s_mov_b32 s2, s100')
            self.stamp_names.append('start')
        p('s_mul_i32 %s, %s, 44' % (s(sHa), s(sQ)))
        p('s_lshl_b32 %s, %s, 2' % (s(sT0), s(sJ)))
        p('s_add_u32 %s, %s, %s' % (s(sHa), s(sHa), s(sT0)))
        p('s_lshl_b32 %s, %s, 1' % (s(sT0), s(sTh)))
        p('s_add_u32 %s, %s, %s' % (s(sHa), s(sHa), s(sT0)))
        p('s_lshl_b32 %s, %s, 11' % (s(sHa), s(sHa)))
        p('s_add_u32 %s, %s, %d' % (s(sHb), s(sHa), 16 * 2048))
        p('s_mul_i32 %s, %s, 12' % (s(sFlag), s(sR)))
        p('s_add_u32 %s, %s, %s' % (s(sFlag), s(sFlag), s(sQ)))
        p('s_lshl_b32 %s, %s, 7' % (s(sFlag), s(sFlag)))
        p('s_lshl_b32 %s, %s, 3' % (s(sT0), s(sJ)))
        p('s_add_u32 %s, %s, %s' % (s(sFlag), s(sFlag), s(sT0)))
        p('s_add_u32 %s, %s, %d' % (s(sFlag), s(sFlag), WS_FLAGS))
        p('s_lshl_b32 %s, %s, 7' % (s(sT0), s(sTh)))
        p('v_lshlrev_b32 v20, 4, v13')
        p('v_add_u32 v20, %s, v20' % s(sT0))
        p('v_add_u32 %s, %d, v20' % (v(vCS), SM_CS))
        p('v_mov_b32 v20, 0x3f803f80')
        for k in range(4):
            p('v_accvgpr_write_b32 %s, v20' % a(aONE + k))
        p('v_mov_b32 %s, 0' % v(vNm))
        p('v_mov_b32 %s, 0' % v(vSv))
        p('s_add_u32 %s, %s, 1' % (s(sTagA), s(sTagA)))
        p('s_add_u32 %s, %s, 1' % (s(sTagB), s(sTagB)))
        p('s_mov_b32 %s, 0x3f803f80' % s(sM0))

    def lambda_code(self):
        p = Prog()
        p('v_lshlrev_b32 %s, 16, %s' % (v(vGa), v(vGa)))
        p('v_lshlrev_b32 %s, 16, %s' % (v(vGb), v(vGb)))
        p('v_lshlrev_b32 v0, 16, %s' % v(vLr))
        p('v_mul_f32 v0, 0x3fb8aa3b, v0')
        p('v_exp_f32 v0, v0')
        self.bf16r(p, 0, 0)
        p('v_mul_f32 v1, v0, %s' % v(vGa))
        p('v_mul_f32 v2, v0, %s' % v(vGb))
        p('v_mul_f32 v1, 0x3fb8aa3b, v1')
        p('v_mul_f32 v2, 0.15915494, v2')
        p('v_exp_f32 v1, v1')
        p('v_rndne_f32 v3, v2')
        p('v_sub_f32 v2, v2, v3')
        p('v_cos_f32 v3, v2')
        p('v_sin_f32 v4, v2')
        p('v_mul_f32 v5, %s, %s' % (v(vGa), v(vGa)))
        p('v_fma_f32 v5, %s, %s, v5' % (v(vGb), v(vGb)))
        p('v_rcp_f32 v5, v5')
        p('v_mul_f32 %s, v1, v3' % v(vLr))
        p('v_mul_f32 v4, v1, v4')
        p('v_add_f32 v6, -1.0, %s' % v(vLr))
        p('v_mul_f32 v7, v6, %s' % v(vGa))
        p('v_fma_f32 v7, v4, %s, v7' % v(vGb))
        p('v_mul_f32 v8, v4, %s' % v(vGa))
        p('v_fma_f32 v8, -v6, %s, v8' % v(vGb))
        p('v_add_f32 v5, v5, v5')
        p('v_mul_f32 v7, v7, v5')
        p('v_mul_f32 %s, -v8, v5' % v(vGb))
        p('v_and_b32 v9, 8, %s' % v(vLane))
        p('v_lshlrev_b32 v9, 28, v9')
        p('v_xor_b32 %s, v7, v9' % v(vGa))
        p('v_xor_b32 v9, 0x80000000, v9')
        p('v_xor_b32 %s, v4, v9' % v(vLi))
        self.csq(p, 0, 1, vLr, vLi, 10)
        self.csq(p, 2, 3, 0, 1, 10)
        self.csq(p, 0, 1, 2, 3, 10)
        self.csq(p, vL16r, vL16i, 0, 1, 10)
        self.csq(p, 0, 1, vL16r, vL16i, 10)
        self.csq(p, 2, 3, 0, 1, 10)
        self.csq(p, vL128r, vL128i, 2, 3, 10)
        p('v_cmp_lt_u32 vcc, 31, %s' % v(vLane))
        p('v_cndmask_b32 %s, 1.0, %s, vcc' % (v(vPr), v(vL16r)))
        p('v_cndmask_b32 %s, 0, %s, vcc' % (v(vPi), v(vL16i)))
        for bit, (cr, ci) in ((0, (0, 1)), (1, (2, 3))):
            with p.atomic():
                p('s_bitcmp1_b32 %s, %d' % (s(sRg), bit))
                p('s_cselect_b64 vcc, -1, 0')
            p('v_cndmask_b32 v4, 1.0, %s, vcc' % v(cr))
            p('v_cndmask_b32 v5, 0, %s, vcc' % v(ci))
            p('v_mul_f32 v6, %s, v5' % v(vPi))
            p('v_mul_f32 v7, %s, v5' % v(vPr))
            p('v_fma_f32 %s, %s, v4, v7' % (v(vPi), v(vPi)))
            p('v_fma_f32 %s, %s, v4, -v6' % (v(vPr), v(vPr)))
        return p

    def colsum_out(self, p, unit):
        p('v_accvgpr_read_b32 v16, %s' % a(aCS))
        p('v_and_b32 v17, 15, %s' % v(vLane))
        p('v_lshlrev_b32 v17, 2, v17')
        p('v_lshl_add_u32 v17, %s, 6, v17' % s(sRg))
        p('v_add_u32 v17, %d, v17' % (SM_CS + 256 * unit))
        with p.atomic():
            p('s_mov_b64 exec, 0xffff')
            p('ds_add_f32 v17, v16')
            p('s_mov_b64 exec, -1')

    def pass1(self, p):
        wA, wT, wC = self.wA, self.wT, self.wC
        CF = [16, 20]
        later = [self.dma_s(i) for i in range(8)] + [self.dma_b(i) for i in range(4)]

        def reads(i):
            q = Prog()
            pp = i % 4
            ox = wA.at(q, XSLOT[pp] * SLOT, 2 * SLOT)
            ot = wT.at(q, ASLOT[pp] * SLOT, SLOT)
            oc = wC.at(q, ASLOT[pp] * SLOT, SLOT)
            for k in range(4):
                q('ds_read_b128 %s, %s offset:%d' % (v(XF + 16 * i + 4 * k, 4), v(vA[k]), ox))
                for jj in range(2):
                    q('ds_read_b64_tr_b16 %s, %s offset:%d' % (a(aRING + 16 * (i % 2) + 4 * k + 2 * jj, 2), v(vT1[k // 2]), ot + (k % 2) * 2048 + jj * 512))
            for jj in range(2):
                q('ds_read_b64_tr_b16 %s, %s offset:%d' % (v(CF[i % 2] + 2 * jj, 2), v(vTC), oc + jj * 512))
            return q

        def compute(i, dmas, side):
            q = Prog()
            dmas = list(dmas)
            for k in range(4):
                c = '0' if (i == 0 and k == 0) else v(ACCA, 16)
                q('v_mfma_f32_32x32x16_bf16 %s, %s, %s, %s' % (v(ACCA, 16), a(aRING + 16 * (i % 2) + 4 * k, 4), v(XF + 16 * i + 4 * k, 4), c))
                if dmas:
                    q.extend(dmas.pop(0))
            q('v_mfma_f32_16x16x32_bf16 %s, %s, %s, %s' % (a(aCS, 4), a(aONE, 4), v(CF[i % 2], 4), '0' if i == 0 else a(aCS, 4)))
            if side is not None:
                q = merge(q, side)
            for k in range(8):
                x = v(XF + 16 * i + k)
                q('v_dot2_f32_bf16 %s, %s, %s, %s' % (v(vNm), x, s(sM0), v(vNm)))
                q('v_dot2_f32_bf16 %s, %s, %s, %s' % (v(vSv), x, x, v(vSv)))
            return q

        lam = self.lambda_code().items
        nl = (len(lam) + 3) // 4
        for e in range(9):
            dm = self.dma_chunk(e + 3) if e < 5 else later[3 * (e - 5):3 * (e - 5) + 3]
            if e < 8:
                p.wait_vm('c%d' % e)
                p.wait_lgkm0()
                p('s_barrier')
                self.stamp(p, 'c%d' % e)
                p.extend(reads(e))
            if e == 0:
                for q in dm:
                    p.extend(q)
            else:
                side = lam[nl * (e - 2):nl * (e - 1)] if 2 <= e < 6 else None
                p.extend(compute(e - 1, dm, side))
        p('v_mov_b32 v0, %s' % v(vNm))
        p('v_mov_b32 v1, %s' % v(vSv))
        p('v_and_b32 v2, 31, %s' % v(vLane))
        p('v_lshlrev_b32 v2, 3, v2')
        p('s_lshl_b32 %s, %s, 8' % (s(sT0), s(sRg)))
        p('v_permlane32_swap_b32 v0, %s' % v(vNm))
        p('v_permlane32_swap_b32 v1, %s' % v(vSv))
        p('v_add_u32 v2, %s, v2' % s(sT0))
        p('v_add_u32 %s, %d, v2' % (v(vZc), SM_STAT))
        p('v_add_f32 v0, v0, %s' % v(vNm))
        p('v_add_f32 v1, v1, %s' % v(vSv))
        p('s_mov_b32 exec_hi, 0')
        p('ds_add_f32 %s, v0' % v(vZc))
        p('ds_add_f32 %s, v1 offset:4' % v(vZc))
        p('s_mov_b32 exec_hi, -1')
        self.colsum_out(p, 0)
        p('s_sub_u32 %s, %s, %s' % (s(sT0), s(sTh), s(sRg)))
        p('s_lshl_b32 %s, %s, 12' % (s(sT0), s(sT0)))
        for k in range(4):
            p('v_add_u32 %s, %s, %s' % (v(vA[k]), s(sT0), v(vA[k])))
        p.wait_vm('s0')
        p.wait_lgkm0()
        p('s_barrier')
        self.stamp(p, 'X')

    def stats_code(self):
        p = Prog()
        p('ds_read_b64 v[0:1], %s' % v(vZc))
        p('v_mul_f32 v0, 0x3b000000, v0')
        p('v_mul_f32 v1, 0x3b000000, v1')
        p('v_fma_f32 v1, -v0, v0, v1')
        p('v_max_f32 v1, 0, v1')
        self.bf16r(p, 2, 0)
        self.bf16r(p, 1, 1)
        p('v_add_f32 v1, 0x3727c5ac, v1')
        self.bf16r(p, 1, 1)
        p('v_sqrt_f32 v1, v1')
        p('v_xor_b32 %s, 0x80000000, v2' % v(vNm))
        self.bf16r(p, vSv, 1)
        p('v_rcp_f32 v3, %s' % v(vSv))
        p('v_lshlrev_b32 v4, 2, %s' % v(vEo))
        p('v_lshl_add_u32 v4, %s, 8, v4' % s(sW))
        p('v_add_u32 v4, %d, v4' % SM_TS)
        p('v_mul_f32 %s, 0xbfb8aa3b, v3' % v(vZc))
        p('ds_write_b32 v4, %s' % v(vNm))
        p('ds_write_b32 v4, v3 offset:128')
        with self.skip(p, 'st', 's_or_b32 %s, %s, %s' % (s(sT0), s(sC), s(sTh))):
            p('s_lshl_b32 %s, %s, 2' % (s(sT0), s(sR)))
            p('s_add_u32 %s, %s, %s' % (s(sT0), s(sT0), s(sRg)))
            p('s_lshl_b32 %s, %s, 8' % (s(sT0), s(sT0)))
            p('s_add_u32 %s, %s, %d' % (s(sT0), s(sT0), WS_STATS))
            p('v_lshlrev_b32 v4, 3, %s' % v(vEo))
            p('s_mov_b32 exec_hi, 0')
            p('buffer_store_dwordx2 v[2:3], v4, %s, %s offen sc1' % (s(SWS, 4), s(sT0)), tag='Ha')
            p('s_mov_b32 exec_hi, -1')
        return p

    def silu_code(self, unit, soff, tag):
        p = Prog()
        CS = [0, 4]
        TT = 8
        p('ds_read_b128 %s, %s offset:%d' % (v(CS[0], 4), v(vCS), 256 * unit))
        for j4 in range(4):
            if j4 < 3:
                p('ds_read_b128 %s, %s offset:%d' % (v(CS[(j4 + 1) % 2], 4), v(vCS), 256 * unit + 32 * (j4 + 1)))
            A = ACCA + 4 * j4
            for i in range(4):
                p('v_fma_f32 %s, %s, %s, %s' % (v(A + i), v(vNm), v(CS[j4 % 2] + i), v(A + i)))
            for i in range(4):
                p('v_mul_f32 %s, %s, %s' % (v(TT + i), v(vZc), v(A + i)))
            for i in range(4):
                p('v_exp_f32 %s, %s' % (v(TT + i), v(TT + i)))
            for i in range(4):
                p('v_fma_f32 %s, %s, %s, %s' % (v(TT + i), v(TT + i), v(vSv), v(vSv)))
            for i in range(4):
                p('v_rcp_f32 %s, %s' % (v(TT + i), v(TT + i)))
            for i in range(4):
                p('v_mul_f32 %s, %s, %s' % (v(A + i), v(A + i), v(TT + i)))
            D = ACCA + 8 * (j4 // 2) + 2 * (j4 % 2)
            p('v_cvt_pk_bf16_f32 %s, %s, %s' % (v(D), v(A), v(A + 1)))
            p('v_cvt_pk_bf16_f32 %s, %s, %s' % (v(D + 1), v(A + 2), v(A + 3)))
            if j4 % 2:
                u = j4 // 2
                p('buffer_store_dwordx4 %s, %s, %s, %s offen offset:%d sc1' % (v(ACCA + 8 * u, 4), v(vHst), s(SWS, 4), s(soff), 2048 * u), tag=tag)
        return p

    def flag(self, p, kind):
        with self.skip(p, 'fl', 's_cmp_lg_u32 %s, 0' % s(sW)):
            p('v_mov_b32 v22, %s' % s(sTagA))
            p('v_mov_b32 v23, %s' % s(sTagB))
            p('s_mov_b64 exec, 1')
            p('buffer_store_dwordx2 v[22:23], off, %s, %s offset:%d sc1' % (s(SWS, 4), s(sFlag), 512 * kind))
            p('s_mov_b64 exec, -1')

    def scan1_code(self):
        p = Prog()
        p('v_and_b32 v0, 31, %s' % v(vLane))
        p('v_lshlrev_b32 v0, 2, v0')
        p('v_lshl_add_u32 v1, %s, 7, v0' % s(sTh))
        p('v_add_u32 v1, %d, v1' % (SM_CS + 256))
        p('ds_read_b32 v1, v1')
        p('v_lshrrev_b32 v2, 5, %s' % v(vLane))
        p('v_lshlrev_b32 v3, 6, v2')
        p('v_lshl_add_u32 v3, %s, 8, v3' % s(sW))
        p('v_add_u32 v3, %d, v3' % SM_TS)
        p('v_lshl_add_u32 v0, %s, 10, v0' % s(sTh))
        p('v_add_u32 %s, %d, v0' % (v(vP), SM_E))
        p('v_lshl_add_u32 %s, v2, 7, %s' % (v(vEo), v(vP)))
        p('v_lshl_add_u32 %s, %s, 8, %s' % (v(vEo), s(sRg), v(vEo)))
        for jq in range(4):
            p('ds_read_b128 v[4:7], v3 offset:%d' % (16 * jq))
            p('ds_read_b128 v[8:11], v3 offset:%d' % (128 + 16 * jq))
            for i in range(4):
                p('v_fma_f32 %s, %s, v1, %s' % (v(ACCS + 4 * jq + i), v(4 + i), v(ACCS + 4 * jq + i)))
            for i in range(4):
                p('v_mul_f32 %s, %s, %s' % (v(ACCS + 4 * jq + i), v(8 + i), v(ACCS + 4 * jq + i)))
        prev = ACCS
        for q in range(1, 16):
            d = 12 + q % 2
            self.cmul_self(p, d, prev, vLr, vLi, add=ACCS + q)
            prev = d
        p('ds_write_b32 %s, %s' % (v(vEo), v(prev)))
        return p

    def combine_code(self):
        p = Prog()
        for k in range(4):
            p('ds_read2_b32 %s, %s offset0:%d offset1:%d' % (v(2 * k, 2), v(vP), 64 * k, 64 * k + 32))
        p('v_lshrrev_b32 v8, 5, %s' % v(vLane))
        p('v_lshl_add_u32 v8, %s, 1, v8' % s(sRg))
        p('v_mov_b32 %s, 0' % v(vP))
        prev = 0
        for sg in range(1, 8):
            p('v_cmp_eq_u32 vcc, %d, v8' % sg)
            p('v_cndmask_b32 %s, %s, %s, vcc' % (v(vP), v(vP), v(prev)))
            self.cmul_self(p, sg, prev, vL16r, vL16i, add=sg)
            prev = sg
        p('v_mov_b32 v8, v7')
        p('v_mov_b32 v9, %s' % s(sTagA))
        p('v_mov_b32 v10, %s' % s(sTagB))
        p('v_mov_b32 v11, 0')
        p('v_lshlrev_b32 v12, 4, %s' % v(vLane))
        with self.skip(p, 'ep', 's_cmp_lg_u32 %s, 0' % s(sRg)):
            p('s_lshl_b32 %s, %s, 4' % (s(sT0), s(sR)))
            p('s_add_u32 %s, %s, %s' % (s(sT0), s(sT0), s(sC)))
            p('s_lshl_b32 %s, %s, 1' % (s(sT0), s(sT0)))
            p('s_add_u32 %s, %s, %s' % (s(sT0), s(sT0), s(sTh)))
            p('s_lshl_b32 %s, %s, 9' % (s(sT0), s(sT0)))
            p('s_add_u32 %s, %s, %d' % (s(sT0), s(sT0), WS_E))
            p('s_mov_b32 exec_hi, 0')
            p('buffer_store_dwordx4 v[8:11], v12, %s, %s offen sc1' % (s(SWS, 4), s(sT0)))
            p('s_mov_b32 exec_hi, -1')
        return p

    def poll_setup(self):
        p = Prog()
        p('s_lshr_b32 %s, %s, 1' % (s(sCnt), s(sR2)))
        p('s_mul_i32 %s, %s, 12' % (s(sCnt), s(sCnt)))
        p('s_add_u32 %s, %s, %s' % (s(sCnt), s(sCnt), s(sRg)))
        p('s_lshl_b32 %s, %s, 7' % (s(sCnt), s(sCnt)))
        p('s_add_u32 %s, %s, %d' % (s(sCnt), s(sCnt), WS_FLAGS))
        p('v_and_b32 %s, 3, %s' % (v(vPoll), v(vLane)))
        p('v_min_u32 %s, 2, %s' % (v(vPollB), v(vPoll)))
        p('v_lshl_add_u32 %s, %s, 3, %s' % (v(vPoll), v(vPoll), s(sCnt)))
        p('v_lshl_add_u32 %s, %s, 3, %s' % (v(vPollB), v(vPollB), s(sCnt)))
        return p

    def poll_issue(self, p, kind, dst):
        p('buffer_load_dwordx2 %s, %s, %s, 0 offen offset:%d sc1' % (v(dst, 2), v(vPollB if kind == 1 else vPoll), s(SWS, 4), 512 * kind))

    def spin(self, p, top, done, loads):
        with p.atomic(optional=True):
            p('s_sub_u32 %s, %s, 1' % (s(sCnt), s(sCnt)))
            p('s_cbranch_scc1 ' + done)
            for l in loads:
                p(l, tag='spin')
            p('s_waitcnt vmcnt(0)')
            p.items[-1].kind = 'spinwait'
            p('s_branch ' + top)

    def poll_check(self, p, kind, dst):
        top, done = self.lab('pl'), self.lab('pd')
        with p.atomic():
            p('s_mov_b32 %s, 0x4000' % s(sCnt))
            p('v_mov_b32 %s, %s' % (v(dst), v(dst)))
            p.items[-1].kind = 'touch'
            p(top + ':')
            p('v_cmp_eq_u32 vcc, %s, %s' % (s(sTagA), v(dst)))
            p('v_cmp_eq_u32 %s, %s, %s' % (s(sT0, 2), s(sTagB), v(dst + 1)))
            p('s_and_b64 vcc, vcc, %s' % s(sT0, 2))
            p('s_cmp_eq_u64 vcc, -1')
            p('s_cbranch_scc1 ' + done)
            self.spin(p, top, done, ['buffer_load_dwordx2 %s, %s, %s, 0 offen offset:%d sc1' % (v(dst, 2), v(vPollB if kind == 1 else vPoll), s(SWS, 4), 512 * kind)])
            p(done + ':')

    def pass23(self, p):
        wA, wT, wC, wB = self.wA, self.wT, self.wC, self.wB
        CF = [16, 20]
        BAR = self.o.bars
        PD = 7

        def rd(q, k):
            i, sp = (k % 32) // 4, k % 4
            dst = aRING + 4 * (k % 8)
            if k < 32:
                o = wA.at(q, SSLOT[i] * SLOT, SLOT)
                q('ds_read_b128 %s, %s offset:%d' % (a(dst, 4), v(vA[sp]), o))
            else:
                o = wT.at(q, BSLOT[i] * SLOT, SLOT)
                for jj in range(2):
                    q('ds_read_b64_tr_b16 %s, %s offset:%d' % (a(dst + 2 * jj, 2), v(vT1[sp // 2]), o + (sp % 2) * 2048 + jj * 512))

        def mm(q, k):
            kk = k % 32
            acc = ACCS if k < 32 else ACCA
            c = '0' if kk == 0 else v(acc, 16)
            w, x = a(aRING + 4 * (k % 8), 4), v(XF + 4 * kk, 4)
            A, B = (x, w) if k < 32 else (w, x)
            q('v_mfma_f32_32x32x16_bf16 %s, %s, %s, %s' % (v(acc, 16), A, B, c))

        def colsum(unit, i0):
            q = Prog()
            for i in range(i0, i0 + 4):
                if unit == 1:
                    o = wB.at(q, SSLOT[i] * SLOT, SLOT)
                    q('ds_read_b128 %s, %s offset:%d' % (v(CF[i % 2], 4), v(vBC), o))
                else:
                    o = wC.at(q, BSLOT[i] * SLOT, SLOT)
                    for jj in range(2):
                        q('ds_read_b64_tr_b16 %s, %s offset:%d' % (v(CF[i % 2] + 2 * jj, 2), v(vTC), o + jj * 512))
                if i > i0:
                    q('v_mfma_f32_16x16x32_bf16 %s, %s, %s, %s' % (a(aCS, 4), a(aONE, 4), v(CF[(i - 1) % 2], 4), '0' if i == 1 else a(aCS, 4)))
            q('v_mfma_f32_16x16x32_bf16 %s, %s, %s, %s' % (a(aCS, 4), a(aONE, 4), v(CF[(i0 + 3) % 2], 4), a(aCS, 4)))
            if i0 == 4:
                self.colsum_out(q, unit)
            return q

        lim = [16, 32, 48, 64]
        segs = []
        nread = 0
        k = 0
        for n in range(4):
            q = Prog()
            end = BAR[n]
            first = True
            while k < end:
                while nread < min(lim[n], k + PD + 1) and nread < k + 8:
                    rd(q, nread)
                    nread += 1
                mm(q, k)
                k += 1
            assert nread == lim[n], (n, nread)
            segs.append(q)
        big = lambda it: isinstance(it, Inst) and it.kind == 'mfma' and it.passes == 8
        sil = self.silu_code(0, sHa, 'Ha').items
        st = self.stats_code().items
        ve = st + sil
        n0 = len(ve) * BAR[0] // 31
        n1 = len(ve) * BAR[1] // 31

        def spread(*progs):
            out = []
            for q in progs:
                out.extend(q.items if isinstance(q, Prog) else q)
            return out

        def two(seg, dmas, cs, valu, tail=None):
            seg = merge(seg, valu, after=big) if valu else seg
            nb = sum(1 for it in seg.items if big(it))
            items = []
            extra = [d.items for d in dmas]
            if cs is not None:
                seg = merge(seg, cs, after=big, start=0, end=max(1, nb - 2))
            out = Prog()
            j = 0
            for it in seg.items:
                out.items.append(it)
                if big(it):
                    if j < len(extra):
                        out.items.extend(extra[j])
                    j += 1
            assert j >= len(extra)
            return out

        d0 = [self.dma_b(i) for i in range(4, 8)] + [self.dma_B2(n) for n in range(3)]
        p.extend(two(segs[0], d0, colsum(1, 0), ve[:n0]))
        p.wait_vm('s1')
        p.wait_lgkm0()
        p('s_barrier')
        self.stamp(p, 'P2m')
        p.extend(two(segs[1], [self.dma_B2(n) for n in range(3, 7)], colsum(1, 4), ve[n0:n1]))
        p.wait_vm('b0')
        p.wait_lgkm0()
        p('s_barrier')
        self.stamp(p, 'P2e')
        seg = segs[2]
        na = 32 - BAR[1]
        seg = merge(seg, ve[n1:] + self.poll_setup().items, after=big, start=0, end=na - 1)
        seg = merge(seg, self.scan1_code(), after=big, start=na + 1)
        p.extend(two(seg, [self.dma_B2(n) for n in range(7, 11)], colsum(2, 0), None))
        p.wait_vm('b1', 'Ha')
        p.wait_lgkm0()
        p('s_barrier')
        self.stamp(p, 'P3m')
        self.flag(p, 0)
        seg = merge(segs[3], self.combine_code(), after=big, start=1, end=10)
        q = Prog()
        self.poll_issue(q, 0, 14)
        seg = merge(seg, q, after=big, start=64 - BAR[2] - 2, end=64 - BAR[2] - 1)
        p.extend(two(seg, [self.dma_B2(n) for n in range(11, 15)], colsum(2, 4), None))
        p.wait_vm('B0', 'B1')
        p.wait_lgkm0()
        p('s_barrier')
        self.stamp(p, 'P3e')

    def a_load(self, p, st):
        if st % 2 == 0:
            p('s_mov_b32 %s, %d' % (s(sAl), st * 2048))
        p('buffer_load_dwordx4 %s, %s, %s, %s offen offset:%d sc1' % (v(XF + 4 * (st % 24), 4), v(vAld), s(SWS, 4), s(sAl), (st % 2) * 2048))

    def gemm2_setup(self, p):
        p('v_and_b32 v0, 31, %s' % v(vLane))
        p('s_lshl_b32 %s, %s, 3' % (s(sT0), s(sRg)))
        p('v_add_u32 v1, %s, v0' % s(sT0))
        p('v_and_b32 v1, 31, v1')
        p('v_and_b32 v2, 32, %s' % v(vLane))
        p('v_add_u32 v1, v1, v2')
        p('s_mul_i32 %s, %s, %d' % (s(sT0), s(sR2), H_R2))
        p('s_mul_i32 %s, %s, %d' % (s(sT1), s(sRg), 44 * 2048))
        p('s_add_u32 %s, %s, %s' % (s(sT0), s(sT0), s(sT1)))
        p('s_lshl_b32 %s, %s, 10' % (s(sT1), s(sTh)))
        p('s_add_u32 %s, %s, %s' % (s(sT0), s(sT0), s(sT1)))
        p('s_add_u32 %s, %s, %d' % (s(sT0), s(sT0), WS_H))
        p('v_lshl_add_u32 %s, v1, 4, %s' % (v(vAld), s(sT0)))

    def gemm2_setup2(self):
        p = Prog()
        p('v_bfe_u32 v0, %s, 2, 2' % v(vLane))
        p('v_bfe_u32 v1, %s, 1, 1' % v(vLane))
        p('v_bfe_u32 v2, %s, 4, 1' % v(vLane))
        p('v_lshl_add_u32 v1, v2, 1, v1')
        p('v_lshrrev_b32 v2, 1, v0')
        p('v_lshlrev_b32 v2, 2, v2')
        p('v_xor_b32 v1, v1, v2')
        p('v_and_b32 v2, 1, %s' % v(vLane))
        p('v_lshlrev_b32 v2, 3, v2')
        p('v_lshl_add_u32 v1, v1, 4, v2')
        p('v_lshrrev_b32 v2, 5, %s' % v(vLane))
        p('v_lshl_add_u32 v0, v2, 2, v0')
        p('v_lshl_add_u32 v1, v0, 7, v1')
        p('s_lshl_b32 %s, %s, 13' % (s(sT0), s(sRg)))
        p('v_add_u32 %s, %s, v1' % (v(vT2[0]), s(sT0)))
        p('v_xor_b32 %s, 64, %s' % (v(vT2[1]), v(vT2[0])))
        p('v_and_b32 v0, 31, %s' % v(vLane))
        p('v_bfe_u32 v1, %s, 1, 3' % v(vLane))
        p('v_xor_b32 v1, v1, v2')
        p('v_lshlrev_b32 v1, 4, v1')
        p('v_lshl_add_u32 v1, v0, 7, v1')
        p('v_add_u32 %s, %s, v1' % (v(vA[0]), s(sT0)))
        for k in range(1, 4):
            p('v_xor_b32 %s, %d, %s' % (v(vA[k]), 32 * k, v(vA[0])))
        self.w2 = Win(vT2)
        self.wc = Win(vA)
        return p

    def g2_read(self, q, st):
        g, sp = st // 4, st % 4
        dst = XF + 96 + 8 * (st % 4)
        base = 4 * (g % 4) * SLOT
        if g < 7:
            o = self.w2.at(q, base, 4 * SLOT)
            for nt in range(2):
                for jj in range(2):
                    q('ds_read_b64_tr_b16 %s, %s offset:%d' % (v(dst + 4 * nt + 2 * jj, 2), v(vT2[nt]), o + sp * 2048 + jj * 1024))
        else:
            o = self.wc.at(q, base, 4 * SLOT)
            for nt in range(2):
                q('ds_read_b128 %s, %s offset:%d' % (v(dst + 4 * nt, 4), v(vA[sp]), o + nt * 4096))

    def g2_mm(self, q, st):
        for nt in range(2):
            c = '0' if st == 0 else a(16 * nt, 16)
            q('v_mfma_f32_32x32x16_bf16 %s, %s, %s, %s' % (a(16 * nt, 16), v(XF + 4 * (st % 24), 4), v(XF + 96 + 8 * (st % 4) + 4 * nt, 4), c))

    def g2_run(self, k0, k1, rlim):
        q = Prog()
        for k in range(k0, k1):
            while self.g2r < min(rlim, k + 4):
                self.g2_read(q, self.g2r)
                self.g2r += 1
            self.g2_mm(q, k)
        return q

    def lookback_issue(self, p):
        p('v_lshrrev_b32 v0, 5, %s' % v(vLane))
        p('s_lshl_b32 %s, %s, 1' % (s(sT0), s(sRg)))
        p('v_add_u32 v0, %s, v0' % s(sT0))
        p('v_lshlrev_b32 v0, 1, v0')
        p('s_sub_u32 %s, %s, 1' % (s(sT0), s(sR)))
        p('s_lshl_b32 %s, %s, 4' % (s(sT0), s(sT0)))
        p('s_add_u32 %s, %s, %s' % (s(sT0), s(sT0), s(sC)))
        p('s_lshl_b32 %s, %s, 1' % (s(sT0), s(sT0)))
        p('s_add_u32 %s, %s, %s' % (s(sT0), s(sT0), s(sTh)))
        p('s_lshl_b32 %s, %s, 9' % (s(sT0), s(sT0)))
        p('s_add_u32 %s, %s, %d' % (s(sT0), s(sT0), WS_E))
        p('v_and_b32 v1, 31, %s' % v(vLane))
        p('v_lshl_add_u32 v1, v1, 4, %s' % s(sT0))
        p('v_lshlrev_b32 v2, 14, v0')
        p('v_sub_u32 v1, v1, v2')
        p('v_subrev_u32 v2, 0x4000, v1')
        p('v_mov_b32 v3, %d' % OOB)
        p('v_cmp_le_u32 %s, %s, v0' % (s(sInv0, 2), s(sR)))
        p('v_add_u32 v0, 1, v0')
        p('v_cmp_le_u32 %s, %s, v0' % (s(sInv1, 2), s(sR)))
        p('v_cndmask_b32 %s, v1, v3, %s' % (v(vTC), s(sInv0, 2)))
        p('v_cndmask_b32 %s, v2, v3, %s' % (v(vBC), s(sInv1, 2)))
        p('buffer_load_dwordx3 v[16:18], %s, %s, 0 offen sc1' % (v(vTC), s(SWS, 4)))
        p('buffer_load_dwordx3 v[20:22], %s, %s, 0 offen sc1' % (v(vBC), s(SWS, 4)))

    def lookback_check(self, p):
        top, done = self.lab('ll'), self.lab('ld')
        p('s_mov_b32 %s, 0x4000' % s(sCnt))
        p('v_mov_b32 v22, v22')
        p.items[-1].kind = 'touch'
        p(top + ':')
        p('v_cmp_eq_u32 vcc, %s, v17' % s(sTagA))
        p('v_cmp_eq_u32 %s, %s, v18' % (s(sT0, 2), s(sTagB)))
        p('s_and_b64 vcc, vcc, %s' % s(sT0, 2))
        p('s_or_b64 %s, vcc, %s' % (s(sM0, 2), s(sInv0, 2)))
        p('v_cmp_eq_u32 vcc, %s, v21' % s(sTagA))
        p('v_cmp_eq_u32 %s, %s, v22' % (s(sT0, 2), s(sTagB)))
        p('s_and_b64 vcc, vcc, %s' % s(sT0, 2))
        p('s_or_b64 vcc, vcc, %s' % s(sInv1, 2))
        p('s_and_b64 vcc, vcc, %s' % s(sM0, 2))
        p('s_cmp_eq_u64 vcc, -1')
        p('s_cbranch_scc1 ' + done)
        self.spin(p, top, done, ['buffer_load_dwordx3 v[16:18], %s, %s, 0 offen sc1' % (v(vTC), s(SWS, 4)),
                                 'buffer_load_dwordx3 v[20:22], %s, %s, 0 offen sc1' % (v(vBC), s(SWS, 4))])
        p(done + ':')
        self.cmul_self(p, 16, 20, vL128r, vL128i, add=16)
        p('ds_write_b32 %s, v16 offset:%d' % (v(vEo), SM_PART - SM_E))

    def scan2_code(self):
        p = Prog()
        p('v_and_b32 v8, 31, %s' % v(vLane))
        p('v_lshlrev_b32 v9, 2, v8')
        p('s_lshl_b32 %s, %s, 10' % (s(sT0), s(sTh)))
        p('v_add_u32 v9, %s, v9' % s(sT0))
        p('v_add_u32 v9, %d, v9' % SM_PART)
        for k in range(4):
            p('ds_read2_b32 %s, v9 offset0:%d offset1:%d' % (v(2 * k, 2), 64 * k, 64 * k + 32))
        self.csq(p, 10, 11, vL128r, vL128i, 12)
        p('v_bfe_u32 v12, v8, 3, 1')
        p('v_lshlrev_b32 v12, 4, v12')
        p('v_and_b32 v13, 7, v8')
        p('v_add_u32 v12, v12, v13')
        p('v_lshrrev_b32 v13, 4, v8')
        p('v_lshl_add_u32 v12, v13, 3, v12')
        p('v_lshlrev_b32 v12, 6, v12')
        p('v_and_b32 v13, 32, %s' % v(vLane))
        p('v_add_u32 v12, v12, v13')
        p('s_add_u32 %s, %s, %d' % (s(sT0), s(sW2k), TR_BASE))
        p('v_add_u32 v12, %s, v12' % s(sT0))
        p('v_lshrrev_b32 v13, 5, %s' % v(vLane))
        p('v_bfe_u32 v14, %s, 2, 2' % v(vLane))
        p('v_lshl_add_u32 v13, v13, 3, v14')
        p('v_lshlrev_b32 v13, 6, v13')
        p('v_bfe_u32 v14, %s, 4, 1' % v(vLane))
        p('v_lshl_add_u32 v13, v14, 5, v13')
        p('v_and_b32 v14, 3, %s' % v(vLane))
        p('v_lshl_add_u32 v13, v14, 3, v13')
        p('v_add_u32 v13, %s, v13' % s(sT0))
        for sg in range(6, -1, -1):
            self.cmul_self(p, sg, sg + 1, 10, 11, add=sg)
        self.cmul_self(p, vP, 0, vPr, vPi, add=vP)
        prev = vP
        for q in range(16):
            self.cmul_self(p, ACCS + q, prev, vLr, vLi, add=ACCS + q)
            prev = ACCS + q
            if q >= 1:
                self.cmul_self(p, ACCA + q - 1, ACCS + q - 1, vGa, vGb)
        self.cmul_self(p, ACCA + 15, ACCS + 15, vGa, vGb)
        for k in range(8):
            p('v_cvt_pk_bf16_f32 %s, %s, %s' % (v(k), v(ACCA + 2 * k), v(ACCA + 2 * k + 1)))
        p('ds_write_b128 v12, v[0:3]')
        p('ds_write_b128 v12, v[4:7] offset:16')
        p.wait_lgkm0()
        for part in range(2):
            for jj in range(2):
                p('ds_read_b64_tr_b16 %s, v13 offset:%d' % (v(ACCA + 4 * part + 2 * jj, 2), 1024 * part + 256 * jj))
        p('s_mul_i32 %s, %s, 44' % (s(sT0), s(sQ)))
        p('s_lshr_b32 %s, %s, 1' % (s(sT1), s(sJ)))
        p('s_lshl_b32 %s, %s, 3' % (s(sT1), s(sT1)))
        p('s_add_u32 %s, %s, %s' % (s(sT0), s(sT0), s(sT1)))
        p('s_and_b32 %s, %s, 1' % (s(sT1), s(sJ)))
        p('s_lshl_b32 %s, %s, 1' % (s(sT1), s(sT1)))
        p('s_add_u32 %s, %s, %s' % (s(sT0), s(sT0), s(sT1)))
        p('s_add_u32 %s, %s, %s' % (s(sT0), s(sT0), s(sTh)))
        p('s_add_u32 %s, %s, 28' % (s(sT0), s(sT0)))
        p('s_lshl_b32 %s, %s, 11' % (s(sT0), s(sT0)))
        p('s_add_u32 %s, %s, 8192' % (s(sT1), s(sT0)))
        for part in range(2):
            p('buffer_store_dwordx4 %s, %s, %s, %s offen sc1' % (v(ACCA + 4 * part, 4), v(vHs), s(SWS, 4), s([sT0, sT1][part])), tag='Hs')
        return p

    def tail_gemm2(self, p):
        big = lambda it: isinstance(it, Inst) and it.kind == 'mfma'
        self.g2r = 0
        p.extend(self.dma_B2(15))
        self.gemm2_setup(p)
        self.poll_check(p, 0, 14)
        self.stamp(p, 'polla')
        for st in range(8):
            self.a_load(p, st)
        with self.skip(p, 'light', 's_cmp_eq_u32 %s, 3' % s(sJ)):
            p.extend(self.silu_code(2, sHb, 'Hb'))
        self.stamp(p, 'silub')
        self.lookback_issue(p)
        for st in range(8, 16):
            self.a_load(p, st)
        p('v_lshrrev_b32 v0, 3, %s' % v(vLane))
        p('v_and_b32 v1, 7, %s' % v(vLane))
        p('v_lshlrev_b32 v1, 4, v1')
        p('v_lshl_add_u32 v0, v0, 10, v1')
        p('s_lshl_b32 %s, %s, 16' % (s(sT0), s(sR2)))
        p('s_lshl_b32 %s, %s, 13' % (s(sT1), s(sW)))
        p('s_add_u32 %s, %s, %s' % (s(sT0), s(sT0), s(sT1)))
        p('s_lshl_b32 %s, %s, 7' % (s(sT1), s(sC2)))
        p('s_add_u32 %s, %s, %s' % (s(sT0), s(sT0), s(sT1)))
        self.dma(p, 0, SX, s(sT0), XR_BASE, sW1k, 'XR')
        p.extend(self.gemm2_setup2())
        p.extend(self.g2_run(0, 8, 8))
        self.stamp(p, 'e01')
        self.lookback_check(p)
        p.wait_vm('B2', 'B3', 'Hb')
        p.wait_lgkm0()
        p('s_barrier')
        self.stamp(p, 'Y')
        self.flag(p, 1)
        for n in range(16, 24):
            p.extend(self.dma_B2(n))
        p.extend(self.scan2_code())
        self.poll_issue(p, 1, 14)
        self.stamp(p, 'scan2')
        p.extend(self.g2_run(8, 14, 16))
        self.poll_check(p, 1, 14)
        for st in range(16, 24):
            self.a_load(p, st)
        p.extend(self.g2_run(14, 16, 16))
        for st in range(24, 28):
            self.a_load(p, st)
        p.wait_vm('B4', 'B5', 'Hs')
        p.wait_lgkm0()
        p('s_barrier')
        self.stamp(p, 'Z')
        self.flag(p, 2)
        p('v_and_b32 v0, 31, %s' % v(vLane))
        p('s_lshl_b32 %s, %s, 6' % (s(sT0), s(sC2)))
        p('v_add_u32 v1, %s, v0' % s(sT0))
        p('v_lshlrev_b32 v2, 1, v1')
        p('global_load_ushort %s, v2, %s' % (v(vGa), s(sDsk, 2)))
        p('global_load_ushort %s, v2, %s offset:64' % (v(vGb), s(sDsk, 2)))
        p('s_lshl_b32 %s, %s, 6' % (s(sT0), s(sR2)))
        p('s_lshl_b32 %s, %s, 5' % (s(sT1), s(sTh)))
        p('s_add_u32 %s, %s, %s' % (s(sT0), s(sT0), s(sT1)))
        p('s_lshl_b32 %s, %s, 3' % (s(sT1), s(sRg)))
        p('s_add_u32 %s, %s, %s' % (s(sT0), s(sT0), s(sT1)))
        p('v_lshrrev_b32 v3, 5, %s' % v(vLane))
        p('v_lshl_add_u32 v3, v3, 2, %s' % s(sT0))
        p('v_lshlrev_b32 v4, 3, v3')
        p('v_add_u32 v4, %d, v4' % WS_STATS)
        p('buffer_load_dwordx4 %s, v4, %s, 0 offen sc1' % (v(ACCS, 4), s(SWS, 4)))
        p('buffer_load_dwordx4 %s, v4, %s, 0 offen offset:16 sc1' % (v(ACCS + 4, 4), s(SWS, 4)))
        p('v_lshlrev_b32 v4, 11, v3')
        p('v_lshl_add_u32 %s, v1, 2, v4' % v(vHst))
        p('v_and_b32 v3, 63, v3')
        p('v_lshlrev_b32 v3, 7, v3')
        p('v_lshl_add_u32 v3, v0, 1, v3')
        p('v_add_u32 %s, %d, v3' % (v(vHs), XR_BASE))
        d = [self.dma_B2(n) for n in range(24, 32)]
        q = self.g2_run(16, 22, 24)
        out = Prog()
        for it in q.items:
            out.items.append(it)
            if big(it) and d:
                out.extend(d.pop(0))
        p.extend(out)
        self.poll_issue(p, 2, 14)
        p.extend(self.g2_run(22, 24, 24))
        p.wait_vm('B6', 'B7')
        p.wait_lgkm0()
        p('s_barrier')
        self.stamp(p, 'e5')
        self.poll_check(p, 2, 14)
        for st in range(28, 36):
            self.a_load(p, st)
        d = [self.dma_B2(n) for n in range(32, 40)]
        q = self.g2_run(24, 28, 32)
        out = Prog()
        for it in q.items:
            out.items.append(it)
            if big(it) and d:
                out.extend(d.pop(0))
        p.extend(out)
        for st in range(36, 44):
            self.a_load(p, st)
        p.extend(self.g2_run(28, 32, 32))
        p.wait_vm('B8', 'B9')
        p.wait_lgkm0()
        p('s_barrier')
        self.stamp(p, 'e7')
        p('s_lshl_b32 %s, %s, 3' % (s(sT0), s(sR2)))
        p('s_add_u32 %s, %s, %s' % (s(sT0), s(sT0), s(sC2)))
        p('s_lshl_b32 %s, %s, 3' % (s(sT0), s(sT0)))
        p('s_add_u32 %s, %s, %s' % (s(sT0), s(sT0), s(sW)))
        with self.skip(p, 'nn', 's_cmp_lg_u32 %s, %d' % (s(sT0), 255 * 8)):
            p('v_mov_b32 v22, %s' % s(sTagA))
            p('v_mov_b32 v23, %s' % s(sTagB))
            p('s_mov_b64 exec, 1')
            p('buffer_store_dwordx2 v[22:23], off, %s, 0 sc1' % s(SWS, 4))
            p('s_mov_b64 exec, -1')
        for n in range(40, 44):
            p.extend(self.dma_B2(n))
        p.extend(self.g2_run(32, 38, 40))
        p.wait_vm('B10', 'XR')
        p.wait_lgkm0()
        p('s_barrier')
        self.stamp(p, 'e9')
        q = self.g2_run(38, 44, 44)
        side = Prog()
        for i in range(4):
            for nt in range(2):
                side('ds_read_u16 %s, %s offset:%d' % (v(ACCA + 2 * i + nt), v(vHs), 128 * i + 64 * nt))
        side('v_lshlrev_b32 v0, 4, %s' % v(vLane))
        side('s_mul_i32 %s, %s, 24576' % (s(sT0), s(sTh)))
        side('s_add_u32 %s, %s, %d' % (s(sT0), s(sT0), RED_BASE))
        side('v_add_u32 v0, %s, v0' % s(sT0))
        for dd in range(4):
            side('s_add_u32 %s, %s, %d' % (s(sT1), s(sRg), dd))
            side('s_and_b32 %s, %s, 3' % (s(sT1), s(sT1)))
            side('s_mul_i32 %s, %s, 6144' % (s(sT1), s(sT1)))
            side('v_add_u32 %s, %s, v0' % (v(1 + dd), s(sT1)))
        side('v_lshlrev_b32 %s, 16, %s' % (v(vGa), v(vGa)))
        side('v_lshlrev_b32 %s, 16, %s' % (v(vGb), v(vGb)))
        for i in range(4):
            for nt in range(2):
                x = ACCA + 2 * i + nt
                side('v_lshlrev_b32 %s, 16, %s' % (v(x), v(x)))
                side('v_sub_f32 v5, %s, %s' % (v(x), v(ACCS + 2 * i)))
                side('v_mul_f32 v6, %s, %s' % (v(ACCS + 2 * i + 1), v([vGa, vGb][nt])))
                side('v_fma_f32 %s, v5, v6, %s' % (v(x), v(x)))
        p.extend(merge(q, side, after=big))
        for dd in range(1, 4):
            for nt in range(2):
                p('ds_write_b128 %s, %s offset:%d' % (v(1 + dd), a(16 * nt + 4 * dd, 4), (dd - 1) * 2048 + nt * 1024))
        for nt in range(2):
            for i in range(4):
                p('v_accvgpr_read_b32 %s, %s' % (v(8 + 4 * nt + i), a(16 * nt + i)))
                p('v_add_f32 %s, %s, %s' % (v(ACCA + 2 * i + nt), v(ACCA + 2 * i + nt), v(8 + 4 * nt + i)))
        p.wait_lgkm0()
        p('s_barrier')
        self.stamp(p, 'red')
        for dd in range(3):
            for nt in range(2):
                p('ds_read_b128 %s, v1 offset:%d' % (v(XF + 8 * dd + 4 * nt, 4), dd * 2048 + nt * 1024))
        p('s_mov_b32 %s, 4096' % s(sT0))
        for nt in range(2):
            for i in range(4):
                x = ACCA + 2 * i + nt
                for dd in range(3):
                    p('v_add_f32 %s, %s, %s' % (v(x), v(x), v(XF + 8 * dd + 4 * nt + i)))
                p('buffer_store_dword %s, %s, %s, %s offen offset:%d' % (v(x), v(vHst), s(SOUT, 4), s(sT0) if i >= 2 else '0', (i % 2) * 2048 + nt * 128))

    def build(self):
        o = self.o
        self.stamp_names = []
        self.wA, self.wT, self.wC, self.wB = Win(vA), Win(vT1), Win([vTC]), Win([vBC])
        p = Prog()
        self.prologue(p)
        self.pass1(p)
        self.pass23(p)
        self.tail_gemm2(p)
        self.stamp_out(p)
        p('L_exit:')
        p('s_endpgm')
        p('L_end:')
        lines, items, nops = finish(p)
        return lines, items, nops


HEADER = open('cdna_kernels/%s.s.ref' % NAME).read().split('; @launch')[0]


def emit(opt):
    g = Gen(opt)
    lines, items, nops = g.build()
    txt = HEADER
    txt += '; @launch grid=(256,1,1) block=(512,1,1) lds=%d\n' % LDS_BYTES
    txt += '.amdgcn_target "amdgcn-amd-amdhsa--gfx950"\n.text\n.globl %s_kernel\n.p2align 8\n.type %s_kernel,@function\n%s_kernel:\n' % (NAME, NAME, NAME)
    txt += '\n'.join(lines) + '\n'
    txt += '''.section .rodata,"a"
.p2align 6
.amdhsa_kernel %s_kernel
  .amdhsa_next_free_vgpr 256
  .amdhsa_next_free_sgpr 102
  .amdhsa_accum_offset %d
  .amdhsa_group_segment_fixed_size 0
  .amdhsa_kernarg_size 120
  .amdhsa_user_sgpr_count 2
  .amdhsa_user_sgpr_kernarg_segment_ptr 1
  .amdhsa_system_sgpr_workgroup_id_x 1
.end_amdhsa_kernel
''' % (NAME, NARCH)
    return txt, items, nops, g


if __name__ == '__main__':
    ap = argparse.ArgumentParser()
    ap.add_argument('-o', default='cdna_kernels/%s.s' % NAME)
    ap.add_argument('--stamps', type=int, default=0)
    ap.add_argument('--only', default='')
    ap.add_argument('--codepf', type=int, default=1)
    ap.add_argument('--warm', type=int, default=1)
    ap.add_argument('--rot', type=int, default=1)
    ap.add_argument('--bars', type=lambda x: [int(y) for y in x.split(',')], default=[11, 27, 44, 64])
    opt = ap.parse_args()
    txt, items, nops, g = emit(opt)
    open(opt.o, 'w').write(txt)
    if opt.stamps:
        import json
        json.dump(g.stamp_names, open(opt.o[:-2] + '.json', 'w'))
    from collections import Counter
    print(len(items), 'instructions; hazard nops', nops, dict(Counter(i.kind for i in items)))
```

```python
import numpy as np


def bf(x):
    u = np.ascontiguousarray(x, dtype=np.float32).view(np.uint32).astype(np.uint64)
    r = (((u + 0x7fff + ((u >> 16) & 1)) >> 16) << 16).astype(np.uint32)
    return r.view(np.float32)


def to_bits(x):
    return (bf(x).view(np.uint32) >> 16).astype(np.uint16)


def from_bits(b):
    return (b.astype(np.uint32) << 16).view(np.float32)


def make_inputs(seed=0):
    r = np.random.default_rng(seed)
    n = lambda *s: bf(r.standard_normal(s).astype(np.float32))
    D = P = 512
    d = {}
    d['x'] = bf(n(2048, D) * 0.05)
    d['lre'] = bf(-0.5 * bf(np.exp(bf(n(P) * 0.2))))
    d['lim'] = bf(n(P) * 0.8)
    for k in ('bre', 'bim', 'cre', 'cim'):
        d[k] = bf(bf(n(P, D) * 0.2) * D ** -0.5)
    d['ldt'] = bf(bf(bf(n(P) * 0.2) * 0.3) - 2.0)
    d['dsk'] = bf(n(D) * 0.05)
    d['bx'] = bf(n(2048, D) * 0.05)
    d['w1'] = bf(bf(n(D, 1792) * 0.8) * D ** -0.5)
    d['w2'] = bf(bf(n(1792, D) * 0.2) * 1792 ** -0.5)
    return d


def reference(d):
    x = d['x'].astype(np.float64)
    m = bf(x.mean(1, keepdims=True))
    v = bf(x.var(1, keepdims=True))
    sd = bf(np.sqrt(bf(v + np.float32(1e-5))))
    xn = bf(bf(x - m) / sd).astype(np.float64)
    lam = d['lre'].astype(np.float64) + 1j * d['lim']
    dt = bf(np.exp(d['ldt'])).astype(np.float64)
    lb = np.exp(dt * lam)
    g = (lb - 1) / lam
    B = d['bre'].astype(np.float64) + 1j * d['bim']
    C = d['cre'].astype(np.float64) + 1j * d['cim']
    Bu0 = xn @ B.T
    h = np.zeros(512, complex)
    hs = np.empty((2048, 512), complex)
    for t in range(2048):
        h = lb * h + Bu0[t]
        hs[t] = h
    y = 2 * ((hs * g) @ C.T).real
    h1 = bf(xn @ d['w1'])
    act = bf(h1 / (1 + np.exp(-h1.astype(np.float64))))
    ffn = bf(act.astype(np.float64) @ d['w2'])
    out = x + (y + bf(xn * d['dsk'])) + ffn
    return dict(out=out.astype(np.float32), m=m, sd=sd, xn=xn, hs=hs, g=g, lb=lb, act=act, y=y, ffn=ffn)
```

```python
import re

_RANGE = re.compile(r'^([vas])\[(\d+):(\d+)\]$')
_SINGLE = re.compile(r'^([vas])(\d+)$')


def regs_of(tok):
    tok = tok.strip()
    if tok.startswith('-'):
        tok = tok[1:]
    if tok.startswith('abs(') and tok.endswith(')'):
        tok = tok[4:-1]
    if tok.startswith('|') and tok.endswith('|'):
        tok = tok[1:-1]
    m = _RANGE.match(tok)
    if m:
        return [m.group(1) + str(i) for i in range(int(m.group(2)), int(m.group(3)) + 1)]
    m = _SINGLE.match(tok)
    if m:
        return [tok]
    if tok in ('vcc', 'exec'):
        return [tok + '_lo', tok + '_hi']
    if tok in ('m0', 'vcc_lo', 'vcc_hi', 'exec_lo', 'exec_hi'):
        return [tok]
    return []


TRANS = ('v_exp_f32', 'v_log_f32', 'v_rcp_f32', 'v_rsq_f32', 'v_sqrt_f32', 'v_sin_f32', 'v_cos_f32')


class Inst:
    __slots__ = ('text', 'op', 'kind', 'defs', 'uses', 'tag', 'optional', 'dpp', 'passes', 'srcc', 'srcab', 'wide_store', 'note')

    def __init__(self, text, tag=None, optional=False):
        self.text = text
        self.tag = tag
        self.optional = optional
        self.dpp = False
        self.passes = 0
        self.srcc = []
        self.srcab = []
        self.wide_store = []
        self.note = None
        t = text.split(';')[0].strip()
        if t.endswith(':') or t.startswith('.') or t == '':
            self.op = t
            self.kind = 'label' if t.endswith(':') else 'directive'
            self.defs, self.uses = [], []
            return
        parts = t.split(None, 1)
        op = parts[0]
        self.op = op
        rest = parts[1] if len(parts) > 1 else ''
        ops = [o.strip() for o in rest.split(',')] if rest else []
        mods = ''
        if ops:
            last = ops[-1].split(None, 1)
            if last:
                ops[-1] = last[0]
                mods = last[1] if len(last) > 1 else ''
        R = [regs_of(o) for o in ops]
        flat = lambda xs: [r for x in xs for r in x]
        defs, uses = [], []
        if op.startswith('v_mfma'):
            kind = 'mfma'
            defs = R[0]
            uses = flat(R[1:])
            self.srcab = R[1] + R[2]
            self.srcc = R[3]
            self.passes = 8 if '32x32x16' in op else 4 if '16x16x32' in op else 16 if '32x32x2_f32' in op else None
            assert self.passes, op
        elif op.startswith('v_'):
            kind = 'valu'
            base = op.replace('_e32', '').replace('_e64', '').replace('_dpp', '').replace('_sdwa', '')
            if base in TRANS:
                kind = 'trans'
            if 'row_' in mods or 'quad_perm' in mods or op.endswith('_dpp'):
                self.dpp = True
            if base.startswith('v_permlane') and base.endswith('swap_b32'):
                defs = R[0] + R[1]
                uses = R[0] + R[1]
            elif base.startswith(('v_fmac', 'v_dot2c', 'v_pk_fmac')):
                defs = R[0]
                uses = flat(R)
            elif base in ('v_add_co_u32', 'v_addc_co_u32', 'v_sub_co_u32'):
                defs = R[0] + R[1]
                uses = flat(R[2:])
            elif base == 'v_writelane_b32':
                defs = R[0]
                uses = flat(R)
            else:
                defs = R[0]
                uses = flat(R[1:])
        elif op.startswith('ds_'):
            kind = 'ds'
            if op.startswith(('ds_read', 'ds_bpermute', 'ds_permute', 'ds_swizzle')):
                defs = R[0]
                uses = flat(R[1:])
            else:
                uses = flat(R)
            if 'addtid' in op:
                uses = uses + ['m0']
        elif op.startswith(('buffer_', 'global_')):
            kind = 'vmem'
            toks = (' ' + mods + ' ')
            if op in ('buffer_inv', 'buffer_wbl2'):
                pass
            elif ' lds ' in toks or op.startswith('global_load_lds'):
                kind = 'dma'
                uses = flat(R) + ['m0']
            elif '_load_' in op:
                defs = R[0]
                uses = flat(R[1:])
            elif 'atomic' in op:
                uses = flat(R)
                if ' sc0 ' in toks:
                    defs = R[0]
            else:
                uses = flat(R)
                if op.endswith(('x3', 'x4')):
                    self.wide_store = R[0] if op.startswith('buffer_') else R[1]
        elif op in ('s_waitcnt', 's_barrier', 's_nop', 's_sleep', 's_endpgm', 's_setprio'):
            kind = op[2:]
        elif op.startswith(('s_cbranch', 's_branch')):
            kind = 'branch'
        elif op.startswith(('s_load', 's_memtime', 's_memrealtime', 's_buffer_load')):
            kind = 'smem'
            defs = R[0]
            uses = flat(R[1:])
        elif op.startswith('s_cmp') or op.startswith('s_bitcmp'):
            kind = 'salu'
            uses = flat(R)
        elif op.startswith('s_'):
            kind = 'salu'
            defs = R[0]
            uses = flat(R[1:])
            if 'saveexec' in op:
                defs = defs + ['exec_lo', 'exec_hi']
        else:
            raise ValueError('unknown op: ' + text)
        self.kind = kind
        self.defs = defs
        self.uses = uses


class Mark:
    def __init__(self, what, tag=None):
        self.what = what
        self.tag = tag


class Group:
    def __init__(self, items):
        self.items = items


def flat(items):
    out = []
    for it in items:
        if isinstance(it, Group):
            out.extend(flat(it.items))
        else:
            out.append(it)
    return out


def weight(it):
    return len(flat([it])) + getattr(it, 'pad', 0)


class _Atomic:
    n = 0

    def __init__(self, prog, optional):
        self.prog = prog
        self.optional = optional

    def __enter__(self):
        self.saved = (self.prog.items, self.prog.force_opt)
        self.prog.items = []
        if self.optional:
            _Atomic.n += 1
            self.prog.force_opt = _Atomic.n
        return self.prog

    def __exit__(self, *a):
        g = Group(self.prog.items)
        self.prog.items, self.prog.force_opt = self.saved
        self.prog.items.append(g)


class Prog:
    def __init__(self):
        self.items = []
        self.force_opt = False

    def __call__(self, text, tag=None):
        for line in text.split('\n'):
            if line.strip():
                self.items.append(Inst(line.strip(), tag, self.force_opt))
        return self

    def atomic(self, optional=False):
        return _Atomic(self, optional)

    def wait_vm(self, *tags):
        self.items.append(Mark('vm', tags))

    def wait_lgkm0(self):
        self.items.append(Mark('lgkm0'))

    def extend(self, other):
        items = other.items if isinstance(other, Prog) else other
        if self.force_opt:
            for it in flat(items):
                if isinstance(it, Inst):
                    it.optional = self.force_opt
        self.items.extend(items)


def merge(main, side, after=lambda it: isinstance(it, Inst) and it.kind == 'mfma', start=0, end=None):
    main = list(main.items if isinstance(main, Prog) else main)
    side = list(side.items if isinstance(side, Prog) else side)
    anchors = [i for i, it in enumerate(main) if after(it)]
    if end is None:
        end = len(anchors)
    anchors = anchors[start:end]
    n = len(anchors)
    out = []
    pos = 0
    k = 0
    aset = {a: j for j, a in enumerate(anchors)}
    total = sum(weight(x) for x in side)
    done = 0
    for i, it in enumerate(main):
        out.append(it)
        if i in aset:
            j = aset[i]
            upto = (total * (j + 1) + n - 1) // n
            while pos < len(side) and (done < upto):
                out.append(side[pos])
                done += weight(side[pos])
                pos += 1
    assert pos == len(side), (pos, len(side), n)
    p = Prog()
    p.items = out
    return p


class _Pend:
    __slots__ = ('defs', 'tag', 'opt', 'seen')

    def __init__(self, it):
        self.defs = set(it.defs)
        self.tag = it.tag
        self.opt = it.optional
        self.seen = None


def _retire(fifo, idx, blk):
    keep = []
    for i, e in enumerate(fifo):
        if i > idx:
            keep.append(e)
        elif blk and e.opt != blk:
            e.seen = blk
            keep.append(e)
    return keep


def place_waits(items):
    out = []
    lg, vm, smem = [], [], []

    def need(fifo, idx, blk):
        return sum(1 for e in fifo[idx + 1:] if (not e.opt) or (blk and e.opt == blk))

    def live(e, blk):
        return not (blk and e.seen == blk)

    for it in items:
        wl = wv = None
        if isinstance(it, Mark):
            if it.what == 'lgkm0':
                if lg or smem:
                    wl = 0
                    lg, smem = [], []
            elif it.what == 'vm':
                idx = max((i for i, e in enumerate(vm) if e.tag in it.tag), default=None)
                if idx is not None:
                    wv = need(vm, idx, False)
                    vm = vm[idx + 1:]
            if wl is not None or wv is not None:
                out.append(_wait(wv, wl))
            continue
        touched = set(it.defs) | set(it.uses)
        blk = it.optional
        if it.kind == 'waitcnt':
            assert not blk
            m = re.search(r'vmcnt\((\d+)\)', it.text)
            if m and int(m.group(1)) == 0:
                vm = []
            m = re.search(r'lgkmcnt\((\d+)\)', it.text)
            if m and int(m.group(1)) == 0:
                lg, smem = [], []
            out.append(it)
            continue
        if any(touched & e.defs and live(e, blk) for e in smem):
            wl = 0
            smem = _retire(smem, len(smem), blk)
            lg = _retire(lg, len(lg), blk)
        else:
            idx = max((i for i, e in enumerate(lg) if touched & e.defs and live(e, blk)), default=None)
            if idx is not None:
                wl = min(15, need(lg, idx, blk))
                lg = _retire(lg, idx, blk)
                if wl == 0:
                    smem = _retire(smem, len(smem), blk)
        idx = max((i for i, e in enumerate(vm) if touched & e.defs and live(e, blk)), default=None)
        if idx is not None:
            wv = need(vm, idx, blk)
            vm = _retire(vm, idx, blk)
        if wl is not None or wv is not None:
            w = _wait(wv, wl)
            w.optional = blk
            out.append(w)
        out.append(it)
        if it.tag == 'spin':
            continue
        if it.kind == 'ds':
            lg.append(_Pend(it))
        elif it.kind == 'smem':
            smem.append(_Pend(it))
        elif it.kind in ('vmem', 'dma'):
            vm.append(_Pend(it))
    return out


def _wait(wv, wl):
    s = 's_waitcnt'
    if wv is not None:
        s += ' vmcnt(%d)' % min(wv, 63)
    if wl is not None:
        s += ' lgkmcnt(%d)' % wl
    return Inst(s)


def _states(it, blk=False):
    if it.kind in ('label', 'directive') or (it.optional and it.optional != blk):
        return 0
    if it.kind == 'nop':
        return int(it.text.split(';')[0].split()[1], 0) + 1
    return 1


def required_gap(p, c):
    pd, cu, cd = set(p.defs), set(c.uses), set(c.defs)
    g = 0
    pv = p.kind in ('valu', 'trans')
    cv = c.kind in ('valu', 'trans')
    if p.kind == 'mfma':
        big = {4: 8, 8: 12, 16: 18}[p.passes]
        if c.kind == 'mfma':
            if pd & set(c.srcab):
                g = max(g, big)
            if pd & set(c.srcc):
                if not (c.srcc == p.defs and c.op == p.op):
                    g = max(g, big - 2)
            elif pd & cd:
                g = max(g, big)
        elif cv or c.kind in ('ds', 'vmem', 'dma'):
            if pd & (cu | cd):
                g = max(g, big)
        if cv and set(p.srcc) & cd and p.passes != 16:
            g = max(g, 7 if p.passes == 8 else 3)
    if pv:
        vg = {r for r in pd if r[0] in 'va' and not r.startswith('vcc')}
        sg = pd - vg
        if c.kind == 'mfma' and vg & cu:
            g = max(g, 2)
        if cv and vg & cu:
            if c.dpp or c.op.startswith('v_permlane'):
                g = max(g, 2)
            if c.op.startswith(('v_readlane', 'v_readfirstlane')):
                g = max(g, 1)
            if p.kind == 'trans':
                g = max(g, 1)
        if p.op.startswith('v_dot') and vg & (cu | cd):
            if not (c.op == p.op):
                g = max(g, 3)
        if sg & cu:
            if cv:
                g = max(g, 4 if c.op.startswith(('v_readlane', 'v_writelane')) else 2)
            if c.kind in ('vmem', 'dma'):
                g = max(g, 5)
            if c.kind in ('salu', 'branch', 'smem'):
                g = max(g, 1)
    if p.kind == 'salu' and 'm0' in pd and 'm0' in cu and c.kind in ('dma', 'ds'):
        g = max(g, 1)
    if p.wide_store and set(p.wide_store) & cd and c.kind != 'vmem':
        g = max(g, 2)
    return g


def pad_hazards(items):
    out = []
    nops = 0
    for it in items:
        if it.kind in ('label', 'directive', 'waitcnt', 'barrier', 'nop', 'sleep', 'endpgm', 'setprio', 'spinwait'):
            out.append(it)
            continue
        need = 0
        dist = 0
        for p in reversed(out):
            if dist >= 18:
                break
            if p.kind not in ('label', 'directive', 'waitcnt', 'barrier', 'nop', 'sleep', 'setprio', 'branch', 'spinwait'):
                g = required_gap(p, it)
                if g > dist:
                    need = max(need, g - dist)
            dist += _states(p, it.optional)
        if need:
            out.append(Inst('s_nop %d' % (need - 1), None, it.optional))
            nops += need
        out.append(it)
    return out, nops


def finish(prog):
    items = place_waits(flat(prog.items))
    items = [it for it in items if it.kind != 'touch']
    items, nops = pad_hazards(items)
    lines = []
    for it in items:
        if it.kind == 'label':
            lines.append(it.text)
        else:
            lines.append('  ' + it.text)
    return lines, items, nops
```

```python
import sys, argparse
from contextlib import contextmanager
from asmir import Prog, Inst, Mark, Group, merge, finish, flat, weight

NAME = 'parallel_sum__ssm_conv_s5__dense_activation_silu__prompt'

SLOT = 8192
SM_CS, SM_TS, SM_DUMMY, SM_STAT, SM_E, SM_PART = 0, 1024, 2048, 4096, 4096, 6144
LDS_BYTES = 163840
WS_FLAGS, WS_STATS, WS_E, WS_H = 0x1000, 0x8000, 0x10000, 0x80000
H_R2 = 176 * 2048
WS_END = WS_H + 32 * H_R2
WS_STAMP = 0xC00000
OOB = 0x40000000


def slot(i):
    return SLOT * (i + 1)


XSLOT = [6, 4, 2, 0]
ASLOT = [15, 16, 17, 18]
SSLOT = [11, 12, 13, 14, 8, 9, 10, 7]
BSLOT = [6, 5, 4, 3, 2, 1, 0, 7]
QUAD = [15, 11, 7, 3]
TR_BASE = slot(0)

vXa, vXb, vW1, vB, vW2 = 24, 25, 26, 27, 28
vA = [29, 30, 31, 32]
vT1 = [33, 34, 35, 36]
vHst, vCS = 37, 38
vLr, vLi, vGa, vGb, vL16r, vL16i, vPr, vPi, vL128r, vL128i = range(39, 49)
vZc, vNm, vSv, vLane, vP, vEo, vL16 = 49, 50, 51, 52, 53, 54, 55
ACCA, ACCS, XF = 56, 72, 88
NARCH = 216
vPoll, vPollB = vXa, vXb
vAld, vC = vW1, vB
vT2, vLB = vT1[0:2], vT1[2:4]
aRING, aCS, aSEL = 0, 32, 36

sLre, sLim, sLdt, sDsk = 4, 6, 8, 10
sInv0, sInv1 = 12, 14
SX, SW1, SB, SW2, SCR, SCI, SWS, SOUT = 32, 36, 40, 44, 48, 52, 56, 60
SHB = SW1
sK = list(range(64, 72))
sKW = list(range(72, 80))
sW, sRg, sTh, sR, sQ, sJ, sC, sR2, sC2, sW1k, sHa, sHb, sFlag, sCnt, sAl, sDm = range(80, 96)
sTagA, sTagB, sZ2, sRg4 = 96, 97, 98, 99
sT0, sT1, sT2 = 30, 31, 3
sM0, sM1 = 100, 101
STAMP_T = 28
STAMP_REGS = list(range(16, 28)) + list(range(4, 10)) + list(range(64, 80))


def v(i, n=1):
    return 'v%d' % i if n == 1 else 'v[%d:%d]' % (i, i + n - 1)


def a(i, n=1):
    return 'a%d' % i if n == 1 else 'a[%d:%d]' % (i, i + n - 1)


def s(i, n=1):
    return 's%d' % i if n == 1 else 's[%d:%d]' % (i, i + n - 1)


DPP = 'row_ror:8 row_mask:0xf bank_mask:0xf'
big = lambda it: isinstance(it, Inst) and it.kind == 'mfma' and it.passes == 8
clock = lambda it: getattr(it, 'note', None) == 'clk'


class Win:
    def __init__(self, regs, base):
        self.regs = regs
        self.base = base

    def at(self, p, addr, inner, nb=None):
        if addr < self.base or addr + inner - self.base > 65535:
            nb = addr if nb is None else nb
            for r in self.regs:
                p('v_add_u32 %s, %s, %s' % (v(r), hex((nb - self.base) & 0xffffffff), v(r)))
            self.base = nb
        return addr - self.base


class Dma:
    def __init__(self, pre, load):
        self.pre, self.load = pre, load

    def both(self):
        return self.pre + [self.load]


def around(seg, dmas, pos, anchor=big):
    out = Prog()
    j = 0
    at = {}
    for d, q in zip(dmas, pos):
        assert q not in at
        at[q] = d
    for it in (seg.items if isinstance(seg, Prog) else seg):
        if anchor(it):
            d = at.pop(j, None)
            j += 1
            if d:
                out.items.extend(d.pre)
                out.items.append(it)
                out.items.append(d.load)
                continue
        out.items.append(it)
    assert not at, (at.keys(), j)
    return out


def gap(n):
    g = Group([])
    g.pad = n
    return g


class Gen:
    def __init__(self, opt):
        self.o = opt
        self.nlab = 0
        self.looping = False

    def lab(self, name):
        self.nlab += 1
        return 'L%s_%d' % (name, self.nlab)

    @contextmanager
    def skip(self, p, name, *cond):
        l = self.lab(name)
        with p.atomic():
            for c in cond:
                p(c)
            p('s_cbranch_scc1 ' + l)
            with p.atomic(optional=True):
                yield l
            p(l + ':')

    def stamp(self, p, name, fine=False):
        if not self.o.stamps or (self.o.only and name not in self.o.only.split(',')) or (fine and not self.o.only):
            return
        k = len(self.stamp_names)
        with p.atomic():
            if k:
                p('s_mov_b32 %s, %s' % (s(STAMP_REGS[k - 1]), s(STAMP_T)))
            if name:
                p('s_memtime %s' % s(STAMP_T, 2))
        self.stamp_names.append(name)

    def stamp_out(self, p):
        if not self.o.stamps:
            return
        self.o.only = ''
        self.stamp(p, 'end')
        self.stamp(p, '')
        self.stamp_names.pop()
        p('s_memrealtime %s' % s(STAMP_T, 2))
        p('v_mov_b32 v0, 0')
        for k in range(len(self.stamp_names)):
            p('v_writelane_b32 v0, %s, %d' % (s(STAMP_REGS[k]), k))
        p('v_writelane_b32 v0, %s, 60' % s(STAMP_T))
        p('v_writelane_b32 v0, s2, 61')
        p('s_lshl_b32 %s, %s, 3' % (s(sT0), s(sR2)))
        p('s_add_u32 %s, %s, %s' % (s(sT0), s(sT0), s(sC2)))
        p('s_lshl_b32 %s, %s, 3' % (s(sT0), s(sT0)))
        p('s_add_u32 %s, %s, %s' % (s(sT0), s(sT0), s(sW)))
        p('s_lshl_b32 %s, %s, 8' % (s(sT0), s(sT0)))
        p('s_add_u32 %s, %s, %d' % (s(sT0), s(sT0), WS_STAMP))
        p('v_lshlrev_b32 v1, 2, %s' % v(vLane))
        p('buffer_store_dword v0, v1, %s, %s offen' % (s(SWS, 4), s(sT0)))
        if self.o.stamps == 2:
            p('s_load_dwordx2 %s, s[0:1], 104' % s(SOUT, 2))
            p('s_mov_b32 %s, 64' % s(SOUT + 2))
            p('v_subrev_u32 v2, %s, v0' % s(STAMP_REGS[0]))
            p('s_sub_u32 %s, %s, s2' % (s(sT1), s(STAMP_T)))
            p('v_writelane_b32 v2, %s, 0' % s(sT1))
            with self.skip(p, 'dbg', 's_cmp_lg_u32 %s, %d' % (s(sT0), WS_STAMP + 256 * 8 * 100)):
                p('buffer_store_dword v2, v1, %s, 0 offen' % s(SOUT, 4))

    def barrier(self, p, name, *tags):
        if tags:
            p.wait_vm(*tags)
        p.wait_lgkm0()
        p('s_barrier')
        if self.o.loop and self.looping:
            self.looping = False
            k = len(self.stamp_names)
            p('s_memtime s[100:101]')
            p('s_waitcnt lgkmcnt(0)')
            p('s_cmp_eq_u32 s2, 8')
            p('s_cselect_b32 %s, s100, %s' % (s(STAMP_REGS[k]), s(STAMP_REGS[k])))
            p('s_sub_u32 s2, s2, 1')
            p('s_cmp_lg_u32 s2, 0')
            p('s_cbranch_scc1 L_loop')
            p('s_mov_b32 %s, %s' % (s(STAMP_REGS[k - 1]), s(STAMP_T)))
            p('s_mov_b32 %s, s100' % s(STAMP_T))
            p('s_mov_b32 s101, 0x3f803f80')
            self.stamp_names += ['first', 'eighth']
        self.stamp(p, name)
        if self.o.loop == name:
            self.looping = True
            p('s_mov_b32 s2, 8')
            p('L_loop:')

    def dma(self, voff, srd, soff, lds, tag, imm=0, pre=None):
        q = [Inst('s_add_u32 m0, %s, %d' % (s(sW1k), lds - imm))]
        if pre:
            q.append(Inst(pre))
        ld = Inst('buffer_load_dwordx4 %s, %s, %s offen%s lds' % (v(voff), s(srd, 4), soff, (' offset:%d' % imm) if imm else ''), tag)
        ld.note = 'clk'
        return Dma(q, ld)

    def dma_chunk(self, i):
        pp = i % 4
        return [self.dma(vXa, SX, s(sK[i]), slot(XSLOT[pp]), 'c%d' % i),
                self.dma(vW1, SW1, s(sKW[i]), slot(ASLOT[pp]), 'c%d' % i),
                self.dma(vXb, SX, s(sK[i]), slot(XSLOT[pp] + 1), 'c%d' % i)]

    def dma_s(self, i):
        return self.dma(vB, SB, s(sK[i]), slot(SSLOT[i]), 's%d' % (i // 4))

    def dma_b(self, i):
        return self.dma(vW1, SW1, s(sKW[i]), slot(BSLOT[i]), 'b0' if i < 4 else 'b1' if i < 7 else 'b2', imm=128)

    def dma_B2(self, g, kg):
        lds = slot(QUAD[g % 4] + kg)
        if g < 7:
            u = 7 * kg + (2 * g if g < 4 else 2 * (g - 4) + 1)
            return self.dma(vW2, SW2, s(sDm), lds, 'B%d' % g, pre='s_mov_b32 %s, %d' % (s(sDm), u * 65536))
        pr, part = (g - 7) // 2, (g - 7) % 2
        return self.dma(vC, [SCR, SCI][part], '0', lds, 'B%d' % g, imm=256 * kg + 128 * pr)

    def B2(self, g):
        return [self.dma_B2(g, kg) for kg in range(4)]

    def bf16r(self, p, dst, src):
        p('v_cvt_pk_bf16_f32 %s, %s, %s' % (v(dst), v(src), v(src)))
        p('v_lshlrev_b32 %s, 16, %s' % (v(dst), v(dst)))

    def cmac(self, p, acc, src, cr, ci):
        p('v_fmac_f32_dpp %s, %s, %s %s' % (v(acc), v(src), v(ci), DPP))
        p('v_fmac_f32 %s, %s, %s' % (v(acc), v(cr), v(src)))

    def csq(self, p, dr, di, sr, si, t):
        p('v_mul_f32 %s, %s, %s' % (v(t), v(si), v(si)))
        p('v_mul_f32 %s, %s, %s' % (v(di), v(sr), v(si)))
        p('v_fma_f32 %s, %s, %s, -%s' % (v(dr), v(sr), v(sr), v(t)))
        p('v_add_f32 %s, %s, %s' % (v(di), v(di), v(di)))

    def ktab(self, p, i):
        if i:
            p('s_add_u32 %s, %s, 128' % (s(sK[i]), s(sK[i - 1])))
        p('s_and_b32 %s, %s, 0x380' % (s(sK[i]), s(sK[i])))
        p('s_mul_i32 %s, %s, 1792' % (s(sKW[i]), s(sK[i])))

    def prologue(self, p):
        o = self.o
        p('s_cmp_ge_u32 s2, 256')
        p('s_cbranch_scc1 L_exit')
        p('s_load_dwordx2 %s, s[0:1], 0' % s(SX, 2))
        p('s_load_dwordx2 %s, s[0:1], 80' % s(SW1, 2))
        if o.stamps:
            p('s_memrealtime s[100:101]')
            p('s_memtime %s' % s(STAMP_T, 2))
            self.stamp_names.append('start')
        p('v_lshrrev_b32 v1, 6, v0')
        p('v_lshrrev_b32 v2, 4, v0')
        p('v_readfirstlane_b32 %s, v1' % s(sW))
        p('s_and_b32 %s, s2, 1' % s(sT0))
        p('v_xor_b32 v2, v2, v0')
        p('s_lshr_b32 %s, s2, 5' % s(sR))
        p('v_and_b32 v2, 7, v2')
        p('s_lshl3_add_u32 %s, %s, %s' % (s(sR), s(sT0), s(sR)))
        p('v_and_b32 v3, 0x1f8, v0')
        p('s_bfe_u32 %s, s2, 0x20001' % s(sQ))
        p('v_lshl_add_u32 v2, v3, 3, v2')
        p('s_bfe_u32 %s, s2, 0x20003' % s(sJ))
        p('s_lshl_b32 %s, %s, 17' % (s(sT0), s(sR)))
        p('v_lshrrev_b32 v4, 2, v0')
        p('v_lshl_add_u32 %s, v2, 4, %s' % (v(vXa), s(sT0)))
        if o.rot:
            p('s_lshl1_add_u32 %s, %s, %s' % (s(sK[0]), s(sJ), s(sR)))
            p('s_lshl_b32 %s, %s, 7' % (s(sK[0]), s(sK[0])))
        else:
            p('s_mov_b32 %s, 0' % s(sK[0]))
        p('v_and_b32 v4, 4, v4')
        p('s_mul_i32 %s, %s, 7' % (s(sT1), s(sQ)))
        p('v_xor_b32 v4, v4, v0')
        p('s_lshl1_add_u32 %s, %s, %s' % (s(sT1), s(sJ), s(sT1)))
        p('v_and_b32 v4, 7, v4')
        p('s_lshl_b32 %s, %s, 7' % (s(sT1), s(sT1)))
        p('v_mul_u32_u24 v5, 448, v3')
        self.ktab(p, 0)
        p('v_lshl_add_u32 v6, v4, 4, %s' % s(sT1))
        p('s_lshl_b32 %s, %s, 10' % (s(sW1k), s(sW)))
        p('s_mov_b32 %s, 2097152' % s(SX + 2))
        p('s_mov_b32 %s, 0x20000' % s(SX + 3))
        p('v_add_u32 %s, v5, v6' % v(vW1))
        p('s_mov_b32 %s, 1835008' % s(SW1 + 2))
        p('s_mov_b32 %s, 0x20000' % s(SW1 + 3))
        p('v_add_u32 %s, 0x10000, %s' % (v(vXb), v(vXa)))
        main = Prog()
        for i in range(3):
            for d in self.dma_chunk(i):
                main.items.append(Group(d.pre))
                main.items.append(d.load)
        q = Prog()
        self.ktab(q, 1)
        q('s_load_dwordx4 %s, s[0:1], 8' % s(sLre, 4))
        q('s_load_dwordx4 %s, s[0:1], 56' % s(sLdt, 4))
        q('s_load_dwordx2 %s, s[0:1], 112' % s(SWS, 2))
        q('s_and_b32 %s, %s, 3' % (s(sRg), s(sW)))
        q('s_lshr_b32 %s, %s, 2' % (s(sTh), s(sW)))
        q('v_and_b32 %s, 63, v0' % v(vLane))
        q('v_lshlrev_b32 %s, 4, %s' % (v(vL16), v(vLane)))
        if o.codepf:
            q('s_getpc_b64 %s' % s(SOUT + 2, 2))
            q('L_pc:')
            q('s_lshr_b32 %s, s2, 3' % s(sT2))
            q('s_lshl_b32 %s, %s, 8' % (s(sT0), s(sW)))
            q('s_or_b32 %s, %s, %s' % (s(sT0), s(sT0), s(sT2)))
            with self.skip(q, 'nopf', 's_cmp_ge_u32 %s, (L_end-L_pc)/1024' % s(sT0)):
                q('s_mov_b32 m0, %d' % SM_DUMMY)
                q('v_lshl_add_u32 v7, %s, 10, %s' % (s(sT2), v(vL16)))
                q('global_load_lds_dwordx4 v7, %s' % s(SOUT + 2, 2))
        self.ktab(q, 2)
        q('s_lshl2_add_u32 %s, %s, %s' % (s(sC), s(sQ), s(sJ)))
        q('s_lshl3_add_u32 %s, %s, 24' % (s(sT0), s(sTh)))
        q('s_load_dwordx2 %s, s[0:1], %s' % (s(SB, 2), s(sT0)))
        q('s_load_dwordx2 %s, s[0:1], 88' % s(SW2, 2))
        q('s_load_dwordx2 %s, s[0:1], 40' % s(SCR, 2))
        q('s_load_dwordx2 %s, s[0:1], 48' % s(SCI, 2))
        q('s_load_dwordx2 %s, s[0:1], 96' % s(SOUT, 2))
        q('s_and_b32 %s, s2, 7' % s(sT0))
        q('s_lshr_b32 %s, s2, 6' % s(sR2))
        q('s_lshl2_add_u32 %s, %s, %s' % (s(sR2), s(sT0), s(sR2)))
        q('s_bfe_u32 %s, s2, 0x30003' % s(sC2))
        q('v_bfe_u32 v8, v0, 4, 1')
        q('v_and_b32 v7, 7, v0')
        q('v_lshl_add_u32 v7, v8, 3, v7')
        q('s_lshl1_add_u32 %s, %s, %s' % (s(sT1), s(sC), s(sTh)))
        q('s_lshl_b32 %s, %s, 5' % (s(sT1), s(sT1)))
        q('v_lshl_add_u32 v7, v7, 1, %s' % s(sT1))
        q('global_load_ushort %s, v7, %s' % (v(vGa), s(sLre, 2)))
        q('global_load_ushort %s, v7, %s' % (v(vGb), s(sLim, 2)))
        q('global_load_ushort %s, v7, %s' % (v(vLr), s(sLdt, 2)))
        q('s_load_dwordx2 %s, %s, 0' % (s(sTagA, 2), s(SWS, 2)))
        q('s_lshl_b32 %s, %s, 1' % (s(sT0), s(sTh)))
        q('s_xor_b32 %s, %s, %s' % (s(sT2), s(sT0), s(sRg)))
        q('s_lshl_b32 %s, %s, 1' % (s(sZ2), s(sT2)))
        q('v_and_b32 v9, 3, v0')
        q('v_bfe_u32 v10, v0, 3, 2')
        q('v_lshl_add_u32 v10, v10, 2, v9')
        q('v_bfe_u32 v11, v0, 2, 1')
        q('v_lshl_add_u32 %s, v11, 4, v10' % v(vEo))
        q('v_bfe_u32 v13, v0, 5, 1')
        q('v_xor_b32 v10, %s, v13' % s(sZ2))
        q('v_bfe_u32 v11, %s, 1, 3' % v(vEo))
        q('v_xor_b32 v10, v10, v11')
        q('v_lshl_add_u32 v10, %s, 3, v10' % v(vEo))
        q('s_lshl_b32 %s, %s, 12' % (s(sT0), s(sRg)))
        q('s_add_u32 %s, %s, %d' % (s(sT0), s(sT0), slot(0)))
        q('v_lshl_add_u32 %s, v10, 4, %s' % (v(vA[0]), s(sT0)))
        for k in range(1, 4):
            q('v_xor_b32 %s, %d, %s' % (v(vA[k]), 32 * k, v(vA[0])))
        q('v_lshl_add_u32 v9, v8, 2, v9')
        q('v_bfe_u32 v10, v0, 3, 1')
        q('v_xor_b32 v10, %s, v10' % s(sTh))
        q('v_lshl_add_u32 v9, v10, 3, v9')
        q('v_bfe_u32 v10, v0, 2, 2')
        q('v_lshl_add_u32 v9, v10, 4, v9')
        q('v_lshl_add_u32 v9, v13, 7, v9')
        q('s_lshl_b32 %s, %s, 11' % (s(sT0), s(sT2)))
        q('s_add_u32 %s, %s, %d' % (s(sT0), s(sT0), slot(ASLOT[0])))
        q('v_lshl_add_u32 %s, v9, 3, %s' % (v(vT1[0]), s(sT0)))
        for k in range(1, 4):
            q('v_xor_b32 %s, %d, %s' % (v(vT1[k]), 2048 * k, v(vT1[0])))
        self.ktab(q, 3)
        self.ktab(q, 4)
        q('v_lshl_add_u32 v3, v3, 3, v4')
        q('s_lshl_b32 %s, %s, 7' % (s(sT0), s(sC2)))
        q('v_lshl_add_u32 %s, v3, 4, %s' % (v(vW2), s(sT0)))
        q('v_and_b32 v2, 0x7ff, v2')
        q('s_lshl_b32 %s, %s, 15' % (s(sT0), s(sC)))
        q('v_lshl_add_u32 %s, v2, 4, %s' % (v(vB), s(sT0)))
        q('v_bfe_u32 v9, v0, 2, 1')
        q('v_cmp_eq_u32 vcc, v8, v9')
        q('s_mov_b32 %s, 0x3f803f80' % s(sM1))
        q('v_mov_b32 v9, %s' % s(sM1))
        q('v_cndmask_b32 v9, 0, v9, vcc')
        q('v_mov_b32 %s, 0' % v(vNm))
        q('v_mov_b32 %s, 0' % v(vSv))
        for k in range(4):
            q('v_accvgpr_write_b32 %s, v9' % a(aSEL + k))
        q('v_lshl_add_u32 v9, v13, 5, %s' % v(vEo))
        q('v_lshlrev_b32 %s, 4, v9' % v(vHst))
        q('v_and_b32 v9, 31, v0')
        q('v_lshl_add_u32 v10, v9, 1, v13')
        q('s_lshl_b32 %s, %s, 9' % (s(sT0), s(sTh)))
        q('v_lshl_add_u32 %s, v10, 3, %s' % (v(vCS), s(sT0)))
        q('s_lshl_b32 %s, %s, 10' % (s(sT0), s(sRg)))
        q('s_add_u32 %s, %s, %d' % (s(sT0), s(sT0), SM_STAT))
        q('v_lshl_add_u32 %s, v9, 5, %s' % (v(vZc), s(sT0)))
        p.extend(merge(main, q, after=clock))
        if o.warm:
            p('s_lshl3_add_u32 %s, s2, %s' % (s(sT0), s(sW)))
            p('s_mov_b32 m0, %d' % SM_DUMMY)
            with self.skip(p, 'w1', 's_cmp_ge_u32 %s, 1792' % s(sT0)):
                p('v_lshl_add_u32 v12, %s, 10, %s' % (s(sT0), v(vL16)))
                p('global_load_lds_dwordx4 v12, %s' % s(SW2, 2))
            with self.skip(p, 'w2', 's_cmp_ge_u32 %s, 4' % s(sW)):
                p('s_and_b32 %s, s2, 127' % s(sT0))
                p('s_lshl2_add_u32 %s, %s, %s' % (s(sT0), s(sT0), s(sW)))
                p('v_lshl_add_u32 v12, %s, 10, %s' % (s(sT0), v(vL16)))
                p('s_cmp_ge_u32 s2, 128')
                p('s_cselect_b32 %s, %s, %s' % (s(sT0), s(SCI), s(SCR)))
                p('s_cselect_b32 %s, %s, %s' % (s(sT1), s(SCI + 1), s(SCR + 1)))
                p('global_load_lds_dwordx4 v12, %s' % s(sT0, 2))
        if o.stamps:
            p('s_mov_b32 s2, s100')

    def setup_late(self):
        o = self.o
        p = Prog()
        for i in range(5, 8):
            self.ktab(p, i)
        p('s_mov_b32 %s, 524288' % s(SB + 2))
        p('s_mov_b32 %s, 0x20000' % s(SB + 3))
        p('s_mov_b64 %s, %s' % (s(SCR + 2, 2), s(SB + 2, 2)))
        p('s_mov_b64 %s, %s' % (s(SCI + 2, 2), s(SB + 2, 2)))
        p('s_mov_b64 %s, %s' % (s(SW2 + 2, 2), s(SW1 + 2, 2)))
        p('s_mov_b32 %s, %d' % (s(SWS + 2), WS_STAMP + 0x80000 if o.stamps else WS_END))
        p('s_mov_b32 %s, 0x20000' % s(SWS + 3))
        p('s_mov_b32 %s, 4194304' % s(SOUT + 2))
        p('s_mov_b32 %s, 0x20000' % s(SOUT + 3))
        p('s_lshl_b32 %s, %s, 2' % (s(sRg4), s(sRg)))
        p('s_lshr_b32 %s, %s, 1' % (s(sHb), s(sRg)))
        p('s_lshl1_add_u32 %s, %s, %s' % (s(sHb), s(sR), s(sHb)))
        p('s_mul_i32 %s, %s, 352' % (s(sHb), s(sHb)))
        p('s_and_b32 %s, %s, 1' % (s(sHa), s(sRg)))
        p('s_add_u32 %s, %s, %s' % (s(sHb), s(sHb), s(sHa)))
        p('s_mul_i32 %s, %s, 88' % (s(sHa), s(sQ)))
        p('s_add_u32 %s, %s, %s' % (s(sHb), s(sHb), s(sHa)))
        p('s_add_u32 %s, %s, %d' % (s(sHb), s(sHb), WS_H // 1024))
        p('s_lshl1_add_u32 %s, %s, %s' % (s(sHa), s(sJ), s(sTh)))
        p('s_lshl2_add_u32 %s, %s, %s' % (s(sHa), s(sHa), s(sHb)))
        p('s_lshl_b32 %s, %s, 10' % (s(sHa), s(sHa)))
        p('s_and_b32 %s, %s, 1' % (s(sFlag), s(sJ)))
        p('s_lshl1_add_u32 %s, %s, %s' % (s(sFlag), s(sFlag), s(sTh)))
        p('s_lshl1_add_u32 %s, %s, %s' % (s(sHb), s(sFlag), s(sHb)))
        p('s_and_b32 %s, %s, 2' % (s(sFlag), s(sJ)))
        p('s_lshl3_add_u32 %s, %s, %s' % (s(sHb), s(sFlag), s(sHb)))
        p('s_add_u32 %s, %s, 56' % (s(sHb), s(sHb)))
        p('s_lshl_b32 %s, %s, 10' % (s(sHb), s(sHb)))
        p('s_mul_i32 %s, %s, 12' % (s(sFlag), s(sR)))
        p('s_add_u32 %s, %s, %s' % (s(sFlag), s(sFlag), s(sQ)))
        p('s_lshl4_add_u32 %s, %s, %s' % (s(sFlag), s(sFlag), s(sJ)))
        p('s_lshl3_add_u32 %s, %s, %d' % (s(sFlag), s(sFlag), WS_FLAGS))
        p('s_add_u32 %s, %s, 1' % (s(sTagA), s(sTagA)))
        p('s_add_u32 %s, %s, 1' % (s(sTagB), s(sTagB)))
        return p

    def lambda_code(self):
        p = Prog()
        p('v_lshlrev_b32 v0, 16, %s' % v(vLr))
        p('v_lshlrev_b32 %s, 16, %s' % (v(vGa), v(vGa)))
        p('v_mul_f32 v0, 0x3fb8aa3b, v0')
        p('v_lshlrev_b32 %s, 16, %s' % (v(vGb), v(vGb)))
        p('v_exp_f32 v0, v0')
        p('v_mul_f32 v5, %s, %s' % (v(vGa), v(vGa)))
        self.bf16r(p, 0, 0)
        p('v_fma_f32 v5, %s, %s, v5' % (v(vGb), v(vGb)))
        p('v_mul_f32 v1, v0, %s' % v(vGa))
        p('v_mul_f32 v2, v0, %s' % v(vGb))
        p('v_mul_f32 v1, 0x3fb8aa3b, v1')
        p('v_mul_f32 v2, 0.15915494, v2')
        p('v_exp_f32 v1, v1')
        p('v_rndne_f32 v3, v2')
        p('v_rcp_f32 v5, v5')
        p('v_sub_f32 v2, v2, v3')
        p('v_cos_f32 v3, v2')
        p('v_sin_f32 v4, v2')
        p('v_and_b32 v9, 8, %s' % v(vLane))
        p('v_mul_f32 %s, v1, v3' % v(vLr))
        p('v_mul_f32 v4, v1, v4')
        p('v_add_f32 v6, -1.0, %s' % v(vLr))
        p('v_mul_f32 v7, v6, %s' % v(vGa))
        p('v_fma_f32 v7, v4, %s, v7' % v(vGb))
        p('v_mul_f32 v8, v4, %s' % v(vGa))
        p('v_fma_f32 v8, -v6, %s, v8' % v(vGb))
        p('v_add_f32 v5, v5, v5')
        p('v_mul_f32 v7, v7, v5')
        p('v_mul_f32 %s, -v8, v5' % v(vGb))
        p('v_lshlrev_b32 v9, 28, v9')
        p('v_xor_b32 %s, v7, v9' % v(vGa))
        p('v_xor_b32 v9, 0x80000000, v9')
        p('v_xor_b32 %s, v4, v9' % v(vLi))
        self.csq(p, 0, 1, vLr, vLi, 10)
        self.csq(p, 2, 3, 0, 1, 10)
        self.csq(p, 0, 1, 2, 3, 10)
        self.csq(p, vL16r, vL16i, 0, 1, 10)
        self.csq(p, 0, 1, vL16r, vL16i, 10)
        self.csq(p, 2, 3, 0, 1, 10)
        self.csq(p, vL128r, vL128i, 2, 3, 10)
        p('v_cmp_lt_u32 vcc, 31, %s' % v(vLane))
        p('v_cndmask_b32 %s, 1.0, %s, vcc' % (v(vPr), v(vL16r)))
        p('v_cndmask_b32 %s, 0, %s, vcc' % (v(vPi), v(vL16i)))
        for bit, (cr, ci) in ((0, (0, 1)), (1, (2, 3))):
            with p.atomic():
                p('s_bitcmp1_b32 %s, %d' % (s(sRg), bit))
                p('s_cselect_b64 vcc, -1, 0')
            p('v_cndmask_b32 v4, 1.0, %s, vcc' % v(cr))
            p('v_cndmask_b32 v5, 0, %s, vcc' % v(ci))
            p('v_mul_f32 v6, %s, v5' % v(vPi))
            p('v_mul_f32 v7, %s, v5' % v(vPr))
            p('v_fma_f32 %s, %s, v4, v7' % (v(vPi), v(vPi)))
            p('v_fma_f32 %s, %s, v4, -v6' % (v(vPr), v(vPr)))
        return p

    def colsum(self, q, frag, first):
        q('v_mfma_f32_16x16x32_bf16 %s, %s, %s, %s' % (a(aCS, 4), a(aSEL, 4), a(frag, 4), '0' if first else a(aCS, 4)))

    def colsum_out(self):
        p = Prog()
        p('v_and_or_b32 v23, %s, -9, %s' % (v(vCS), s(sRg4)))
        p('ds_write_b32 v23, %s offset:%d' % (a(aCS), SM_CS))
        return p

    def centre(self, p, acc, ssm):
        p('ds_read_b64 v[22:23], %s offset:%d' % (v(vCS), SM_CS))
        p.items.append(gap(self.o.ldsgap))
        p('v_add_f32 v22, v22, v23')
        return 'v_mfma_f32_32x32x2_f32 %s, %s, %s, %s' % (v(acc, 16), v(vNm) if ssm else 'v22', 'v22' if ssm else v(vNm), v(acc, 16))

    def ssm_addr(self):
        p = Prog()
        p('v_and_b32 v11, 7, %s' % v(vLane))
        p('v_bfe_u32 v12, %s, 4, 1' % v(vLane))
        p('v_lshl_add_u32 v11, v12, 3, v11')
        p('v_bfe_u32 v12, v11, 1, 3')
        p('v_bfe_u32 v13, %s, 3, 1' % v(vLane))
        p('v_lshl_add_u32 v11, v13, 5, v11')
        p('v_lshrrev_b32 v13, 5, %s' % v(vLane))
        p('v_xor_b32 v13, %s, v13' % s(sZ2))
        p('v_xor_b32 v12, v12, v13')
        p('v_lshl_add_u32 v11, v11, 3, v12')
        with p.atomic():
            p('s_lshl_b32 %s, %s, 11' % (s(sT0), s(sTh)))
            p('s_add_u32 %s, %s, %d' % (s(sT0), s(sT0), slot(7)))
            p('v_lshl_add_u32 %s, v11, 4, %s' % (v(vA[0]), s(sT0)))
        for k in range(1, 4):
            p('v_xor_b32 %s, %d, %s' % (v(vA[k]), 32 * k, v(vA[0])))
        return p

    def pass1(self, p):
        later = [self.dma_s(i) for i in range(8)] + [self.dma_b(i) for i in range(4)]

        def reads(i):
            q = Prog()
            pp = i % 4
            for k in range(4):
                q('ds_read_b128 %s, %s offset:%d' % (v(XF + 16 * i + 4 * k, 4), v(vA[k]), slot(XSLOT[pp]) - slot(0)))
                for jj in range(2):
                    q('ds_read_b64_tr_b16 %s, %s offset:%d' % (a(aRING + 16 * (i % 2) + 4 * k + 2 * jj, 2), v(vT1[k]), pp * SLOT + jj * 512))
            return q

        def mm(q, i, k):
            c = '0' if (i == 0 and k == 0) else v(ACCA, 16)
            q('v_mfma_f32_32x32x16_bf16 %s, %s, %s, %s' % (v(ACCA, 16), a(aRING + 16 * (i % 2) + 4 * k, 4), v(XF + 16 * i + 4 * k, 4), c))

        def dots(q, i):
            for k in range(8):
                x = v(XF + 16 * i + k)
                q('v_dot2_f32_bf16 %s, %s, %s, %s' % (v(vNm), x, s(sM1), v(vNm)))
                q('v_dot2_f32_bf16 %s, %s, %s, %s' % (v(vSv), x, x, v(vSv)))

        late = self.setup_late().items
        lam = self.lambda_code().items
        side = {1: late[:len(late) // 2], 2: late[len(late) // 2:]}
        nl = (len(lam) + 3) // 4
        for e in range(3, 7):
            side[e] = lam[nl * (e - 3):nl * (e - 2)]
        for e in range(8):
            dm = self.dma_chunk(e + 3) if e < 5 else later[3 * (e - 5):3 * (e - 5) + 3]
            self.barrier(p, 'c%d' % e, 'c%d' % e)
            if e == 0:
                q = reads(0)
                p.extend(around(q, dm, [1, 5, 9], anchor=lambda it: it.kind == 'ds'))
                continue
            q = Prog()
            for k in range(4):
                mm(q, e - 1, k)
            q = merge(q, reads(e), end=3)
            if e == 7:
                with q.atomic():
                    pass
            if e in side:
                q = merge(q, side[e])
            if e == 7:
                pre = Prog()
                with pre.atomic():
                    pre('s_cmp_eq_u32 %s, 3' % s(sJ))
                    pre('s_cselect_b32 %s, 0, %s' % (s(SW1 + 2), s(SW1 + 2)))
                q.items = pre.items + q.items
            q = around(q, dm, [0, 1, 2])
            self.colsum(q, aRING + 16 * ((e - 1) % 2), e == 1)
            dots(q, e - 1)
            p.extend(q)
            self.stamp(p, 'k%d' % (e - 1), fine=True)
        q = Prog()
        mm(q, 7, 0)
        self.colsum(q, aRING + 16, False)
        dm = later[9:12]
        q.items.extend(dm[0].both())
        q.extend(self.ssm_addr())
        q.items.extend(dm[1].both())
        dots(q, 7)
        q.items.extend(dm[2].both())
        q('v_lshrrev_b32 v0, 5, %s' % v(vLane))
        q('v_lshl_add_u32 v0, %s, 1, v0' % s(sTh))
        q('v_lshl_add_u32 v0, v0, 3, %s' % v(vZc))
        q('ds_write_b64 v0, %s' % v(vNm, 2))
        q.extend(self.colsum_out())
        p.extend(q)
        self.barrier(p, 'X', 's0')
        self.p1_rest = Prog()
        for k in range(1, 4):
            mm(self.p1_rest, 7, k)

    def stats_code(self):
        p = Prog()
        p('v_add_f32 v0, v0, v2')
        p('v_add_f32 v4, v4, v6')
        p('v_add_f32 v1, v1, v3')
        p('v_add_f32 v5, v5, v7')
        p('v_add_f32 v0, v0, v4')
        p('v_add_f32 v1, v1, v5')
        p('v_mul_f32 v0, 0x3b000000, v0')
        p('v_mul_f32 v1, 0x3b000000, v1')
        self.bf16r(p, 2, 0)
        p('v_fma_f32 v1, -v0, v0, v1')
        p('v_xor_b32 %s, 0x80000000, v2' % v(vNm))
        return p

    def stats_code2(self):
        p = Prog()
        p('v_max_f32 v1, 0, v1')
        self.bf16r(p, 1, 1)
        p('v_add_f32 v1, 0x3727c5ac, v1')
        self.bf16r(p, 1, 1)
        p('v_sqrt_f32 v1, v1')
        p('v_lshlrev_b32 v4, 2, %s' % v(vEo))
        self.bf16r(p, vSv, 1)
        p('v_rcp_f32 v3, %s' % v(vSv))
        p('v_lshl_add_u32 v4, %s, 7, v4' % s(sW))
        p('v_mul_f32 %s, 0xbfb8aa3b, v3' % v(vZc))
        p('ds_write_b32 v4, v3 offset:%d' % SM_TS)
        with self.skip(p, 'st', 's_or_b32 %s, %s, %s' % (s(sT0), s(sC), s(sTh))):
            p('s_lshl2_add_u32 %s, %s, %s' % (s(sT0), s(sR), s(sRg)))
            p('s_lshl_b32 %s, %s, 8' % (s(sT0), s(sT0)))
            p('s_add_u32 %s, %s, %d' % (s(sT0), s(sT0), WS_STATS))
            p('v_lshlrev_b32 v4, 3, %s' % v(vEo))
            p('s_mov_b32 exec_hi, 0')
            p('buffer_store_dwordx2 v[2:3], v4, %s, %s offen sc1' % (s(SWS, 4), s(sT0)), tag='Ha')
            p('s_mov_b32 exec_hi, -1')
        return p

    def silu_code(self, srd, imm, tag):
        p = Prog()
        for j4 in range(4):
            A = ACCA + 4 * j4
            TT = 8 + 4 * (j4 % 2)
            for i in range(4):
                p('v_mul_f32 %s, %s, %s' % (v(TT + i), v(vZc), v(A + i)))
            for i in range(4):
                p('v_exp_f32 %s, %s' % (v(TT + i), v(TT + i)))
            for i in range(4):
                p('v_fma_f32 %s, %s, %s, %s' % (v(TT + i), v(TT + i), v(vSv), v(vSv)))
            for i in range(4):
                p('v_rcp_f32 %s, %s' % (v(TT + i), v(TT + i)))
            for i in range(4):
                p('v_mul_f32 %s, %s, %s' % (v(A + i), v(A + i), v(TT + i)))
            D = ACCA + 8 * (j4 // 2) + 2 * (j4 % 2)
            p('v_cvt_pk_bf16_f32 %s, %s, %s' % (v(D), v(A), v(A + 1)))
            p('v_cvt_pk_bf16_f32 %s, %s, %s' % (v(D + 1), v(A + 2), v(A + 3)))
            if j4 % 2:
                u = j4 // 2
                p('buffer_store_dwordx4 %s, %s, %s, %s offen offset:%d sc1' % (v(ACCA + 8 * u, 4), v(vHst), s(srd, 4), s(sHa), 2048 * u), tag=tag)
        return p

    def flag(self, p, kind):
        with self.skip(p, 'fl', 's_cmp_lg_u32 %s, 0' % s(sW)):
            p('v_mov_b32 v22, %s' % s(sTagA))
            p('v_mov_b32 v23, %s' % s(sTagB))
            p('s_mov_b64 exec, 1')
            p('buffer_store_dwordx2 v[22:23], off, %s, %s offset:%d sc1' % (s(SWS, 4), s(sFlag), 512 * kind))
            p('s_mov_b64 exec, -1')

    def scan1_pre(self):
        p = Prog()
        p('v_lshrrev_b32 v2, 5, %s' % v(vLane))
        p('v_lshlrev_b32 v3, 6, v2')
        p('v_lshl_add_u32 v3, %s, 7, v3' % s(sW))
        for jq in range(4):
            p('ds_read_b128 %s, v3 offset:%d' % (v(4 + 4 * jq, 4), SM_TS + 16 * jq))
        p('v_and_b32 v0, 31, %s' % v(vLane))
        p('v_lshlrev_b32 v0, 2, v0')
        p('v_lshl_add_u32 %s, %s, 10, v0' % (v(vP), s(sTh)))
        p('v_lshl_add_u32 %s, v2, 7, %s' % (v(vEo), v(vP)))
        p('v_lshl_add_u32 %s, %s, 8, %s' % (v(vEo), s(sRg), v(vEo)))
        return p

    def scan1_code(self):
        p = Prog()
        sc = lambda q: p('v_mul_f32 %s, %s, %s' % (v(ACCS + q), v(4 + q), v(ACCS + q)))
        sc(0)
        sc(1)
        prev = ACCS
        for q in range(1, 16):
            d = q % 2
            p('v_fma_f32 %s, %s, %s, %s' % (v(d), v(vLr), v(prev), v(ACCS + q)))
            if q < 15:
                sc(q + 1)
            p('v_fmac_f32_dpp %s, %s, %s %s' % (v(d), v(prev), v(vLi), DPP))
            prev = d
        p('ds_write_b32 %s, %s offset:%d' % (v(vEo), v(prev), SM_E))
        return p

    def read8(self, p, addr, base):
        with p.atomic():
            p('v_add_u32 v9, %d, %s' % (base, v(addr)))
            for k in range(4):
                p('ds_read2_b32 %s, v9 offset0:%d offset1:%d' % (v(2 * k, 2), 64 * k, 64 * k + 32))

    def combine_code(self):
        p = Prog()
        self.read8(p, vP, SM_E)
        p('v_lshrrev_b32 v8, 5, %s' % v(vLane))
        p('v_lshl_add_u32 v8, %s, 1, v8' % s(sRg))
        p('v_mov_b32 %s, 0' % v(vP))
        p('v_mov_b32 v10, %s' % s(sTagA))
        p('v_mov_b32 v11, %s' % s(sTagB))
        p.items.append(gap(self.o.ldsgap))
        for sg in range(1, 8):
            p('v_cmp_eq_u32 vcc, %d, v8' % sg)
            self.cmac(p, sg, sg - 1, vL16r, vL16i)
            p('v_cndmask_b32 %s, %s, %s, vcc' % (v(vP), v(vP), v(sg - 1)))
        p('v_mov_b32 v8, v7')
        with self.skip(p, 'ep', 's_cmp_lg_u32 %s, 0' % s(sRg)):
            p('s_lshl4_add_u32 %s, %s, %s' % (s(sT0), s(sR), s(sC)))
            p('s_lshl1_add_u32 %s, %s, %s' % (s(sT0), s(sT0), s(sTh)))
            p('s_lshl_b32 %s, %s, 9' % (s(sT0), s(sT0)))
            p('s_add_u32 %s, %s, %d' % (s(sT0), s(sT0), WS_E))
            p('s_mov_b32 exec_hi, 0')
            p('buffer_store_dwordx4 v[8:11], %s, %s, %s offen sc1' % (v(vL16), s(SWS, 4), s(sT0)))
            p('s_mov_b32 exec_hi, -1')
        return p

    def poll_setup(self):
        p = Prog()
        p('s_lshr_b32 %s, %s, 1' % (s(sCnt), s(sR2)))
        p('s_mul_i32 %s, %s, 12' % (s(sCnt), s(sCnt)))
        p('s_add_u32 %s, %s, %s' % (s(sCnt), s(sCnt), s(sRg)))
        p('s_lshl_b32 %s, %s, 7' % (s(sCnt), s(sCnt)))
        p('s_add_u32 %s, %s, %d' % (s(sCnt), s(sCnt), WS_FLAGS))
        p('v_and_b32 %s, 3, %s' % (v(vPoll), v(vLane)))
        p('v_min_u32 %s, 2, %s' % (v(vPollB), v(vPoll)))
        p('v_lshl_add_u32 %s, %s, 3, %s' % (v(vPoll), v(vPoll), s(sCnt)))
        p('v_lshl_add_u32 %s, %s, 3, %s' % (v(vPollB), v(vPollB), s(sCnt)))
        return p

    def poll_load(self, kind, dst):
        return 'buffer_load_dwordx2 %s, %s, %s, 0 offen offset:%d sc1' % (v(dst, 2), v(vPollB if kind == 1 else vPoll), s(SWS, 4), 512 * kind)

    def spin(self, p, top, done, loads):
        with p.atomic(optional=True):
            p('s_sub_u32 %s, %s, 1' % (s(sCnt), s(sCnt)))
            p('s_cbranch_scc1 ' + done)
            for l in loads:
                p(l, tag='spin')
            p('s_waitcnt vmcnt(0)')
            p.items[-1].kind = 'spinwait'
            p('s_branch ' + top)

    def poll_check(self, p, kind, dst):
        top, done = self.lab('pl'), self.lab('pd')
        with p.atomic():
            p('s_mov_b32 %s, 0x4000' % s(sCnt))
            p('v_mov_b32 %s, %s' % (v(dst), v(dst)))
            p.items[-1].kind = 'touch'
            p(top + ':')
            p('v_cmp_eq_u64 vcc, %s, %s' % (s(sTagA, 2), v(dst, 2)))
            p('s_cmp_eq_u64 vcc, -1')
            p('s_cbranch_scc1 ' + done)
            self.spin(p, top, done, [self.poll_load(kind, dst)])
            p(done + ':')

    def pass23(self, p):
        o = self.o
        BAR = o.bars
        PD = 7
        wT = Win(vT1, slot(ASLOT[0]))

        def rd(q, k):
            i, sp = (k % 32) // 4, k % 4
            dst = aRING + 4 * (k % 8)
            if k < 32:
                q('ds_read_b128 %s, %s offset:%d' % (a(dst, 4), v(vA[sp]), slot(SSLOT[i]) - slot(7)))
            else:
                o_ = wT.at(q, slot(BSLOT[i]), 512, slot(0))
                for jj in range(2):
                    q('ds_read_b64_tr_b16 %s, %s offset:%d' % (a(dst + 2 * jj, 2), v(vT1[sp]), o_ + jj * 512))

        def mm(q, k):
            kk = k % 32
            acc = ACCS if k < 32 else ACCA
            c = '0' if kk == 0 else v(acc, 16)
            w, x = a(aRING + 4 * (k % 8), 4), v(XF + 4 * kk, 4)
            A, B = (x, w) if k < 32 else (w, x)
            q('v_mfma_f32_32x32x16_bf16 %s, %s, %s, %s' % (v(acc, 16), A, B, c))
            if k % 4 == 0:
                self.colsum(q, aRING + 4 * (k % 8), kk == 0)

        lim = [16, 48, 60, 64, 64]
        need = [16, 32, 48, 64]
        segs = []
        q = Prog()
        q('ds_read_b128 v[0:3], %s' % v(vZc))
        q('ds_read_b128 v[4:7], %s offset:16' % v(vZc))
        q('ds_read_b64 v[22:23], %s offset:%d' % (v(vCS), SM_CS))
        for k in range(5):
            rd(q, k)
        for k, it in enumerate(self.p1_rest.items):
            q.items.append(it)
            rd(q, 5 + k)
        nread = 8
        k = 0
        for n, end in enumerate(BAR + [64]):
            while k < end:
                while nread < min(lim[n], k + PD + 1):
                    rd(q, nread)
                    nread += 1
                mm(q, k)
                k += 1
            assert n == 4 or nread >= need[n], (n, nread)
            segs.append(q)
            q = Prog()
        st = self.stats_code()
        st('v_add_f32 v22, v22, v23')
        corr = Prog()
        corr('v_mfma_f32_32x32x2_f32 %s, v22, %s, %s' % (v(ACCA, 16), v(vNm), v(ACCA, 16)))
        ve = self.stats_code2().items + self.silu_code(SWS, 0, 'Ha').items
        s0 = 3 + o.s0
        na0 = 3 + BAR[0] - s0
        tot = na0 + (31 - BAR[0])
        wt = [weight(x) for x in ve]

        def cut(frac):
            acc = 0
            for i, w_ in enumerate(wt):
                if acc >= frac * sum(wt):
                    return i
                acc += w_
            return len(wt)
        n0, n1 = cut(na0 / tot), cut((na0 + BAR[1] - BAR[0]) / tot)
        seg = merge(segs[0], st, after=big, start=1, end=4)
        seg = merge(seg, corr, after=big, start=4, end=5)
        seg = merge(seg, ve[:n0], after=big, start=s0)
        d0 = [self.dma_b(i) for i in range(4, 7)] + self.B2(0)
        p.extend(around(seg, d0, [0, 2, 4, 6, 8, 10, 12]))
        self.barrier(p, 'P2m', 's1', 'b0')
        seg = merge(segs[1], ve[n0:n1], after=big)
        seg = merge(seg, self.colsum_out(), after=big, start=29 - BAR[0], end=30 - BAR[0])
        q = Prog()
        with q.atomic():
            q('s_lshl_b32 %s, %s, 16' % (s(sT0), s(sC2)))
            q('s_lshl_b32 %s, %s, 17' % (s(sT1), s(sR)))
            q('s_sub_u32 %s, %s, %s' % (s(sT0), s(sT0), s(sT1)))
            q('v_add_u32 %s, %s, %s' % (v(vC), s(sT0), v(vXa)))
        q.extend(self.poll_setup())
        seg = merge(seg, q, after=big, start=8, end=16)
        p.extend(around(seg, self.B2(1), [1, 5, 9, 13]))
        self.barrier(p, 'P2e', 'b1')
        na = 32 - BAR[1]
        q = Prog()
        q('ds_read_b64 v[22:23], %s offset:%d' % (v(vCS), SM_CS))
        seg = Prog()
        seg.items = q.items + ve[n1:] + segs[2].items
        seg = merge(seg, self.scan1_pre(), after=big, start=0, end=na + 1)
        q = Prog()
        q('v_add_f32 v22, v22, v23')
        q('v_mfma_f32_32x32x2_f32 %s, %s, v22, %s' % (v(ACCS, 16), v(vNm), v(ACCS, 16)))
        seg = merge(seg, q, after=big, start=na + 1, end=na + 2)
        seg = merge(seg, self.scan1_code(), after=big, start=na + 4)
        p.extend(around(seg, [self.dma_b(7)] + self.B2(2)[1:], [0, 4, 8, 12]))
        self.barrier(p, 'P3m', 'b2', 'Ha')
        self.flag(p, 0)
        nb = BAR[3] - BAR[2]
        seg = merge(segs[3], self.combine_code(), after=big, start=0, end=o.comb)
        seg = merge(seg, self.colsum_out(), after=big, start=61 - BAR[2], end=62 - BAR[2])
        q = Prog()
        self.gemm2_setup(q)
        q(self.poll_load(0, 14))
        seg = merge(seg, q, after=big, start=nb - 5, end=nb - 1)
        p.extend(around(seg, self.B2(3), [1, 4, 7, 10]))
        self.barrier(p, 'P3e', 'B0', 'B1')
        self.p3_rest = segs[4]

    def a_load(self, p, st):
        if st % 2 == 0:
            p('s_mov_b32 %s, %d' % (s(sAl), st * 2048))
        p('buffer_load_dwordx4 %s, %s, %s, %s offen offset:%d sc1' % (v(XF + 4 * (st % 24), 4), v(vAld), s(SWS, 4), s(sAl), (st % 2) * 2048))
        p.items[-1].note = 'clk'

    def a_loads(self, k0, k1):
        p = Prog()
        for st in range(k0, k1):
            self.a_load(p, st)
        return p

    def dmas(self, ds):
        p = Prog()
        for d in ds:
            p.items.extend(d.both())
        return p

    def gemm2_setup(self, p):
        with p.atomic():
            p('s_lshl2_add_u32 %s, %s, %s' % (s(sT0), s(sR2), s(sRg)))
            p('s_mul_i32 %s, %s, 88' % (s(sT0), s(sT0)))
            p('s_add_u32 %s, %s, %s' % (s(sT0), s(sT0), s(sTh)))
            p('s_add_u32 %s, %s, %d' % (s(sT0), s(sT0), WS_H // 1024))
            p('v_lshl_add_u32 %s, %s, 10, %s' % (v(vAld), s(sT0), v(vL16)))
        p('s_mov_b64 %s, %s' % (s(SHB, 2), s(SWS, 2)))
        with p.atomic():
            p('s_cmp_eq_u32 %s, 3' % s(sJ))
            p('s_cselect_b32 %s, 0, %s' % (s(SHB + 2), s(SWS + 2)))
        p('s_add_u32 %s, %s, %d' % (s(sHa), s(sHa), 16 * 2048))

    def gemm2_setup2(self):
        p = Prog()
        p('v_and_b32 v0, 3, %s' % v(vLane))
        p('v_bfe_u32 v1, %s, 4, 1' % v(vLane))
        p('v_lshl_add_u32 v0, v1, 2, v0')
        p('v_bfe_u32 v1, %s, 3, 1' % v(vLane))
        p('v_lshl_add_u32 v0, v1, 3, v0')
        p('v_bfe_u32 v1, %s, 2, 2' % v(vLane))
        p('v_lshl_add_u32 v0, v1, 4, v0')
        p('v_lshrrev_b32 v2, 5, %s' % v(vLane))
        p('v_lshl_add_u32 v0, v2, 6, v0')
        with p.atomic():
            p('s_lshl_b32 %s, %s, 13' % (s(sT0), s(sRg)))
            p('s_add_u32 %s, %s, %d' % (s(sT0), s(sT0), slot(QUAD[1])))
            p('v_lshl_add_u32 %s, v0, 3, %s' % (v(vT2[0]), s(sT0)))
        p('v_xor_b32 %s, 64, %s' % (v(vT2[1]), v(vT2[0])))
        self.w2 = Win(vT2, slot(QUAD[1]))
        return p

    def gemm2_setup3(self):
        p = Prog()
        p('v_and_b32 v0, 31, %s' % v(vLane))
        p('v_bfe_u32 v1, %s, 1, 3' % v(vLane))
        p('v_lshrrev_b32 v2, 5, %s' % v(vLane))
        p('v_xor_b32 v1, v1, v2')
        p('v_lshl_add_u32 v1, v0, 3, v1')
        with p.atomic():
            p('s_lshl_b32 %s, %s, 13' % (s(sT0), s(sRg)))
            p('s_add_u32 %s, %s, %d' % (s(sT0), s(sT0), slot(QUAD[3])))
            p('v_lshl_add_u32 %s, v1, 4, %s' % (v(vA[0]), s(sT0)))
        for k in range(1, 4):
            p('v_xor_b32 %s, %d, %s' % (v(vA[k]), 32 * k, v(vA[0])))
        self.wc = Win(vA, slot(QUAD[3]))
        return p

    def g2_read(self, q, st):
        g, sp = st // 4, st % 4
        dst = 8 * (st % 4)
        base = slot(QUAD[g % 4])
        nb = slot(QUAD[1]) if g % 4 < 2 else slot(QUAD[3])
        if g < 7:
            o = self.w2.at(q, base, 7168, nb)
            for nt in range(2):
                for jj in range(2):
                    q('ds_read_b64_tr_b16 %s, %s offset:%d' % (a(dst + 4 * nt + 2 * jj, 2), v(vT2[nt]), o + sp * 2048 + jj * 1024))
        else:
            o = self.wc.at(q, base, 4096, nb)
            for nt in range(2):
                q('ds_read_b128 %s, %s offset:%d' % (a(dst + 4 * nt, 4), v(vA[sp]), o + nt * 4096))

    def g2_mm(self, q, st):
        for nt in range(2):
            acc = v(XF + 96 + 16 * nt, 16)
            q('v_mfma_f32_32x32x16_bf16 %s, %s, %s, %s' % (acc, v(XF + 4 * (st % 24), 4), a(8 * (st % 4) + 4 * nt, 4), '0' if st == 0 else acc))

    def g2_run(self, k0, k1, rlim):
        q = Prog()
        for k in range(k0, k1):
            while self.g2r < min(rlim, k + 4):
                self.g2_read(q, self.g2r)
                self.g2r += 1
            self.g2_mm(q, k)
        return q

    def lookback_issue(self):
        p = Prog()
        p('v_lshrrev_b32 v0, 5, %s' % v(vLane))
        p('v_lshl_add_u32 v0, %s, 1, v0' % s(sRg))
        p('v_lshlrev_b32 v0, 1, v0')
        p('v_and_b32 v1, 31, %s' % v(vLane))
        with p.atomic():
            p('s_lshl4_add_u32 %s, %s, %s' % (s(sT0), s(sR), s(sC)))
            p('s_lshl1_add_u32 %s, %s, %s' % (s(sT0), s(sT0), s(sTh)))
            p('s_lshl_b32 %s, %s, 9' % (s(sT0), s(sT0)))
            p('s_add_u32 %s, %s, %d' % (s(sT0), s(sT0), WS_E - 0x4000))
            p('v_lshl_add_u32 v1, v1, 4, %s' % s(sT0))
        p('v_lshlrev_b32 v2, 14, v0')
        p('v_cmp_le_u32 %s, %s, v0' % (s(sInv0, 2), s(sR)))
        p('v_add_u32 v0, 1, v0')
        p('v_cmp_le_u32 %s, %s, v0' % (s(sInv1, 2), s(sR)))
        p('v_sub_u32 v1, v1, v2')
        p('v_subrev_u32 v2, 0x4000, v1')
        p('v_mov_b32 v3, %d' % OOB)
        p('v_cndmask_b32 %s, v1, v3, %s' % (v(vLB[0]), s(sInv0, 2)))
        p('v_cndmask_b32 %s, v2, v3, %s' % (v(vLB[1]), s(sInv1, 2)))
        for l in self.lb_loads():
            p(l)
        return p

    def lb_loads(self):
        return ['buffer_load_dwordx4 v[16:19], %s, %s, 0 offen sc1' % (v(vLB[0]), s(SWS, 4)),
                'buffer_load_dwordx4 v[20:23], %s, %s, 0 offen sc1' % (v(vLB[1]), s(SWS, 4))]

    def lookback_check(self, p):
        top, done = self.lab('ll'), self.lab('ld')
        p('s_mov_b32 %s, 0x4000' % s(sCnt))
        p('v_mov_b32 v22, v22')
        p.items[-1].kind = 'touch'
        p(top + ':')
        p('v_cmp_eq_u64 vcc, %s, v[18:19]' % s(sTagA, 2))
        p('v_cmp_eq_u64 %s, %s, v[22:23]' % (s(sM0, 2), s(sTagA, 2)))
        p('s_or_b64 vcc, vcc, %s' % s(sInv0, 2))
        p('s_or_b64 %s, %s, %s' % (s(sM0, 2), s(sM0, 2), s(sInv1, 2)))
        p('s_and_b64 vcc, vcc, %s' % s(sM0, 2))
        p('s_cmp_eq_u64 vcc, -1')
        p('s_cbranch_scc1 ' + done)
        self.spin(p, top, done, self.lb_loads())
        p(done + ':')
        self.cmac(p, 16, 20, vL128r, vL128i)
        p('ds_write_b32 %s, v16 offset:%d' % (v(vEo), SM_PART))

    def scan2_code(self):
        p = Prog()
        p('v_and_b32 v8, 31, %s' % v(vLane))
        p('v_lshlrev_b32 v9, 2, v8')
        p('v_lshl_add_u32 v9, %s, 10, v9' % s(sTh))
        self.read8(p, 9, SM_PART)
        self.csq(p, 10, 11, vL128r, vL128i, 12)
        fill = Prog()
        fill('v_bfe_u32 v12, v8, 3, 1')
        fill('v_and_b32 v13, 7, v8')
        fill('v_lshl_add_u32 v12, v12, 4, v13')
        fill('v_lshrrev_b32 v13, 4, v8')
        fill('v_lshl_add_u32 v12, v13, 3, v12')
        fill('v_and_b32 v13, 32, %s' % v(vLane))
        fill('v_lshl_add_u32 v12, v12, 6, v13')
        fill('v_lshl_add_u32 v12, %s, 1, v12' % s(sW1k))
        fill('v_lshrrev_b32 v13, 5, %s' % v(vLane))
        fill('v_bfe_u32 v15, %s, 2, 2' % v(vLane))
        fill('v_lshl_add_u32 v13, v13, 3, v15')
        fill('v_bfe_u32 v15, %s, 4, 1' % v(vLane))
        fill('v_lshl_add_u32 v13, v13, 1, v15')
        fill('v_and_b32 v15, 3, %s' % v(vLane))
        fill('v_lshl_add_u32 v13, v13, 2, v15')
        fill('v_lshlrev_b32 v13, 3, v13')
        fill = fill.items
        for sg in range(6, -1, -1):
            self.cmac(p, sg, sg + 1, 10, 11)
            p.items.extend([fill.pop(0), fill.pop(0)])
        self.cmac(p, vP, 0, vPr, vPi)
        p.items.extend(fill)
        p('v_lshl_add_u32 v13, %s, 1, v13' % s(sW1k))
        prev = vP
        for q in range(17):
            if q < 16:
                self.cmac(p, ACCS + q, prev, vLr, vLi)
            if q >= 1:
                p('v_mul_f32_dpp %s, %s, %s %s' % (v(ACCA + q - 1), v(prev), v(vGb), DPP))
                p('v_fmac_f32 %s, %s, %s' % (v(ACCA + q - 1), v(vGa), v(prev)))
            if q >= 3 and q % 2:
                k = (q - 3) // 2
                p('v_cvt_pk_bf16_f32 %s, %s, %s' % (v(k), v(ACCA + 2 * k), v(ACCA + 2 * k + 1)))
            if q == 9:
                p('ds_write_b128 v12, v[0:3] offset:%d' % TR_BASE)
            prev = ACCS + q
        p('v_cvt_pk_bf16_f32 v7, %s, %s' % (v(ACCA + 14), v(ACCA + 15)))
        p('ds_write_b128 v12, v[4:7] offset:%d' % (TR_BASE + 16))
        for part in range(2):
            for jj in range(2):
                p('ds_read_b64_tr_b16 %s, v13 offset:%d' % (v(ACCA + 4 * part + 2 * jj, 2), TR_BASE + 1024 * part + 256 * jj))
        p('s_add_u32 %s, %s, 8192' % (s(sHa), s(sHb)))
        p.items.append(gap(self.o.ldsgap))
        for part in range(2):
            p('buffer_store_dwordx4 %s, %s, %s, %s offen sc1' % (v(ACCA + 4 * part, 4), v(vL16), s(SWS, 4), s([sHb, sHa][part])), tag='Hs')
        return p

    def out_setup(self):
        p = Prog()
        vO, vR = vHst, vCS
        p('v_bfe_u32 v0, %s, 3, 1' % v(vLane))
        p('v_lshrrev_b32 v1, 4, %s' % v(vLane))
        p('v_and_b32 v2, 15, %s' % v(vLane))
        p('v_lshl_add_u32 v3, v0, 2, v1')
        with p.atomic():
            p('s_lshl1_add_u32 %s, %s, %s' % (s(sT0), s(sR2), s(sTh)))
            p('s_lshl2_add_u32 %s, %s, %s' % (s(sT0), s(sT0), s(sRg)))
            p('v_lshl_add_u32 v3, %s, 3, v3' % s(sT0))
        p('v_lshl_add_u32 v2, %s, 4, v2' % s(sC2))
        p('v_lshlrev_b32 v4, 3, v3')
        p('v_lshlrev_b32 v6, 3, v2')
        p('v_xor_b32 v5, 32, v4')
        with p.atomic():
            p('s_mov_b32 %s, %d' % (s(sT0), WS_STATS))
            p('buffer_load_dwordx2 %s, v4, %s, %s offen sc1' % (v(ACCS, 2), s(SWS, 4), s(sT0)))
            p('buffer_load_dwordx2 %s, v5, %s, %s offen sc1' % (v(ACCS + 2, 2), s(SWS, 4), s(sT0)))
        p('global_load_dwordx2 %s, v6, %s' % (v(ACCS + 4, 2), s(sDsk, 2)))
        p('v_lshl_add_u32 v4, v3, 10, v6')
        p('v_xor_b32 v5, 0x1000, v4')
        p('buffer_load_dwordx2 %s, v4, %s, 0 offen' % (v(ACCS + 6, 2), s(SX, 4)))
        p('buffer_load_dwordx2 %s, v5, %s, 0 offen' % (v(ACCS + 8, 2), s(SX, 4)))
        p('v_lshlrev_b32 %s, 1, v4' % v(vO))
        p('v_mul_u32_u24 v0, 4224, v0')
        p('v_lshl_add_u32 v0, v1, 8, v0')
        p('v_and_b32 v2, 7, v2')
        p('v_lshl_add_u32 v0, v2, 4, v0')
        with p.atomic():
            p('s_lshl_b32 %s, %s, 5' % (s(sT0), s(sTh)))
            p('s_add_u32 %s, %s, %s' % (s(sT0), s(sT0), s(sRg)))
            p('v_lshl_add_u32 %s, %s, 10, v0' % (v(vR), s(sT0)))
        return p

    def out_terms(self):
        p = Prog()
        for k in range(2):
            p('v_lshlrev_b32 %s, 16, %s' % (v(2 * k), v(ACCS + 4 + k)))
            p('v_and_b32 %s, 0xffff0000, %s' % (v(2 * k + 1), v(ACCS + 4 + k)))
        for j in range(2):
            for k in range(2):
                p('v_lshlrev_b32 %s, 16, %s' % (v(ACCA + 4 * j + 2 * k), v(ACCS + 6 + 2 * j + k)))
                p('v_and_b32 %s, 0xffff0000, %s' % (v(ACCA + 4 * j + 2 * k + 1), v(ACCS + 6 + 2 * j + k)))
            for i in range(4):
                x = ACCA + 4 * j + i
                p('v_sub_f32 v4, %s, %s' % (v(x), v(ACCS + 2 * j)))
                p('v_mul_f32 v5, %s, %s' % (v(ACCS + 2 * j + 1), v(i)))
                p('v_fmac_f32 %s, v4, v5' % v(x))
        return p

    def tail_gemm2(self, p):
        o = self.o
        self.g2r = 0
        p('ds_read_b64 v[22:23], %s offset:%d' % (v(vCS), SM_CS))
        p.extend(around(self.p3_rest, [self.dma_B2(2, 0)], [0]))
        p('v_add_f32 v22, v22, v23')
        self.poll_check(p, 0, 14)
        self.stamp(p, 'polla')
        p('v_mfma_f32_32x32x2_f32 %s, v22, %s, %s' % (v(ACCA, 16), v(vNm), v(ACCA, 16)))
        main = self.a_loads(0, 16)
        main = merge(main, self.gemm2_setup2(), after=clock, start=0, end=2)
        main = merge(main, self.silu_code(SHB, 0, 'Hb').items + self.lookback_issue().items, after=clock, start=2, end=o.t1a)
        main = merge(main, self.g2_run(0, o.t1s, 8), after=clock, start=o.t1a)
        p.extend(main)
        p.extend(self.g2_run(o.t1s, 8, 8))
        self.stamp(p, 'e01')
        self.lookback_check(p)
        self.stamp(p, 'lb', fine=True)
        self.barrier(p, 'Y', 'B2', 'B3', 'Hb')
        self.flag(p, 1)
        main = merge(self.g2_run(8, 16, 16), self.scan2_code(), after=big, start=0, end=o.t2)
        main = around(main, self.B2(4) + self.B2(5), [0, 2, 4, 6, 8, 10, 12, 14])
        p.extend(main)
        p(self.poll_load(1, 14))
        self.barrier(p, 'Z')
        main = merge(self.dmas(self.B2(6) + self.B2(7)), self.out_setup().items + self.gemm2_setup3().items, after=clock)
        p.extend(main)
        self.poll_check(p, 1, 14)
        self.stamp(p, 'pollb')
        p.extend(self.a_loads(16, 20))
        self.barrier(p, 'U0', 'Hs', 'B4', 'B5')
        self.flag(p, 2)
        main = merge(self.a_loads(20, 28), self.g2_run(16, o.t3s, 24), after=clock, start=o.t3a)
        p.extend(main)
        p.extend(self.g2_run(o.t3s, 24, 24))
        self.barrier(p, 'U', 'B6')
        main = around(self.g2_run(24, 28, 28), self.B2(8) + self.B2(9), list(range(8)))
        q = Prog()
        q(self.poll_load(2, 14))
        main = merge(main, q, after=big, start=o.t4p, end=o.t4p + 1)
        main = merge(main, self.out_terms(), after=big)
        p.extend(main)
        self.barrier(p, 'V', 'B7')
        p.extend(self.dmas(self.B2(10)))
        self.poll_check(p, 2, 14)
        self.stamp(p, 'polls')
        main = merge(self.a_loads(28, 44), self.g2_run(28, 32, 32), after=clock, start=o.t5a, end=o.t5b)
        cutat = [i for i, it in enumerate(main.items) if clock(it)][o.t5b]
        p.extend(main.items[:cutat])
        self.barrier(p, 'W', 'B8', 'B9', 'B10')
        p('s_lshl3_add_u32 %s, %s, %s' % (s(sT0), s(sR2), s(sC2)))
        p('s_lshl3_add_u32 %s, %s, %s' % (s(sT0), s(sT0), s(sW)))
        with self.skip(p, 'nn', 's_cmp_lg_u32 %s, %d' % (s(sT0), 255 * 8)):
            p('v_mov_b32 v22, %s' % s(sTagA))
            p('v_mov_b32 v23, %s' % s(sTagB))
            p('s_mov_b64 exec, 1')
            p('buffer_store_dwordx2 v[22:23], off, %s, 0 sc1' % s(SWS, 4))
            p('s_mov_b64 exec, -1')
        rest = Prog()
        rest.items = main.items[cutat:]
        n = sum(1 for it in rest.items if clock(it))
        p.extend(merge(rest, self.g2_run(32, 32 + n, 44), after=clock))
        p.extend(self.g2_run(32 + n, 44, 44))
        self.stamp(p, 'mm')
        p('s_lshl_b32 m0, %s, 3' % s(sW1k))
        p('v_xor_b32 v0, 128, %s' % v(vCS))
        p('v_xor_b32 v1, 0x2000, %s' % v(vHst))
        for r in range(32):
            p('ds_write_addtid_b32 %s offset:%d' % (v(XF + 96 + r), 256 * r))
        self.barrier(p, 'red')
        for j in range(2):
            for kg in range(4):
                p('ds_read_b128 %s, %s offset:%d' % (v(XF + 16 * j + 4 * kg, 4), v([vCS, 0][j]), 8192 * kg))
        for j in range(2):
            for kg in range(4):
                for i in range(4):
                    x = ACCA + 4 * j + i
                    p('v_add_f32 %s, %s, %s' % (v(x), v(x), v(XF + 16 * j + 4 * kg + i)))
            p('buffer_store_dwordx4 %s, %s, %s, 0 offen %s' % (v(ACCA + 4 * j, 4), v([vHst, 1][j]), s(SOUT, 4), o.outmod))

    def build(self):
        self.stamp_names = []
        p = Prog()
        self.prologue(p)
        self.pass1(p)
        self.pass23(p)
        self.tail_gemm2(p)
        self.stamp_out(p)
        p('L_exit:')
        p('s_endpgm')
        p('L_end:')
        return finish(p)


HEADER = open('cdna_kernels/%s.s.ref' % NAME).read().split('; @launch')[0]


def emit(opt):
    g = Gen(opt)
    lines, items, nops = g.build()
    txt = HEADER
    txt += '; @launch grid=(256,1,1) block=(512,1,1) lds=%d\n' % LDS_BYTES
    txt += '.amdgcn_target "amdgcn-amd-amdhsa--gfx950"\n.text\n.globl %s_kernel\n.p2align 8\n.type %s_kernel,@function\n%s_kernel:\n' % (NAME, NAME, NAME)
    txt += '\n'.join(lines) + '\n'
    txt += '''.section .rodata,"a"
.p2align 6
.amdhsa_kernel %s_kernel
  .amdhsa_next_free_vgpr 256
  .amdhsa_next_free_sgpr 102
  .amdhsa_accum_offset %d
  .amdhsa_group_segment_fixed_size 0
  .amdhsa_kernarg_size 120
  .amdhsa_user_sgpr_count 2
  .amdhsa_user_sgpr_kernarg_segment_ptr 1
  .amdhsa_system_sgpr_workgroup_id_x 1
.end_amdhsa_kernel
''' % (NAME, NARCH)
    return txt, items, nops, g


def parser():
    ap = argparse.ArgumentParser()
    ap.add_argument('-o', default='cdna_kernels/%s.s' % NAME)
    ap.add_argument('--stamps', type=int, default=0)
    ap.add_argument('--only', default='')
    ap.add_argument('--loop', default='')
    ap.add_argument('--codepf', type=int, default=1)
    ap.add_argument('--warm', type=int, default=1)
    ap.add_argument('--rot', type=int, default=1)
    ap.add_argument('--bars', type=lambda x: [int(y) for y in x.split(',')], default=[11, 30, 46, 62])
    ap.add_argument('--ldsgap', type=int, default=8)
    ap.add_argument('--s0', type=int, default=2)
    ap.add_argument('--comb', type=int, default=9)
    ap.add_argument('--t1a', type=int, default=11)
    ap.add_argument('--t1s', type=int, default=4)
    ap.add_argument('--t2', type=int, default=16)
    ap.add_argument('--t3a', type=int, default=3)
    ap.add_argument('--t3s', type=int, default=20)
    ap.add_argument('--t4p', type=int, default=2)
    ap.add_argument('--t5a', type=int, default=7)
    ap.add_argument('--t5b', type=int, default=12)
    ap.add_argument('--outmod', default='nt')
    return ap


if __name__ == '__main__':
    opt = parser().parse_args()
    txt, items, nops, g = emit(opt)
    open(opt.o, 'w').write(txt)
    if opt.stamps:
        import json
        json.dump(g.stamp_names, open(opt.o[:-2] + '.json', 'w'))
    from collections import Counter
    print(len(items), 'instructions; hazard nops', nops, dict(Counter(i.kind for i in items)))
```
